```python
import torch

def _softmax(x, axis=-1):
    return torch.softmax(x, dim=axis)
def _gelu(x):
    return torch.nn.functional.gelu(x, approximate="tanh")
def _silu(x):
    return torch.nn.functional.silu(x)
def _sigmoid(x):
    return torch.sigmoid(x)
def _layernorm(x, axis=-1, eps=1e-5):
    m = x.mean(dim=axis, keepdim=True)
    v = x.var(dim=axis, keepdim=True, unbiased=False)
    return (x - m) / torch.sqrt(v + eps)
def _scatter_add(tgt, idx, src, axis=0):
    return tgt.clone().index_add_(axis, idx, src)
def _segment_sum(src, seg, n):
    out = torch.zeros((n,) + src.shape[1:], dtype=src.dtype)
    return out.index_add_(0, seg, src)
def _pad(x, pw):
    flat = tuple(v for pair in reversed(pw) for v in pair)
    return torch.nn.functional.pad(x, flat)

kernel_name = 'parallel_sum__ssm_conv_h3__dense_activation_relu__prompt'

def setup_inputs():

    _w = (lambda a: (lambda t: t.to(torch.bfloat16) if t.is_floating_point() else t)(torch.as_tensor(a)))
    def _A_setup():
        B, S, D = 1, 2048, 448
        ks = 4
        return {
            "q": _w((lambda *s: torch.randn(*s, dtype=torch.bfloat16) * 0.05)(B, S, D)),
            "k": _w((lambda *s: torch.randn(*s, dtype=torch.bfloat16) * 0.8)(B, S, D)),
            "v": _w((lambda *s: torch.randn(*s, dtype=torch.bfloat16) * 0.8)(B, S, D)),
            "shift_k": _w((lambda *s: torch.randn(*s, dtype=torch.bfloat16) * 0.8)(D, ks) * 0.5),
            "ssm_k": _w((lambda *s: torch.randn(*s, dtype=torch.bfloat16) * 0.8)(D, S) * (1.0 / S ** 0.5)),
            "ssm_D": _w((lambda *s: torch.randn(*s, dtype=torch.bfloat16) * 0.8)(D)),
        }
    _A_in = _A_setup()

    def _B_setup():
        B, S, D, Dff = 1, 2048, 448, 1792
        return {
            "x": _w((lambda *s: torch.randn(*s, dtype=torch.bfloat16) * 0.05)(B, S, D)),
            "w1": _w((lambda *s: torch.randn(*s, dtype=torch.bfloat16) * 0.05)(D, Dff)),
            "w2": _w((lambda *s: torch.randn(*s, dtype=torch.bfloat16) * 0.05)(Dff, D)),
        }
    _B_in = _B_setup()

    return {
        "A_q": _A_in["q"],
        "A_k": _A_in["k"],
        "A_v": _A_in["v"],
        "A_shift_k": _A_in["shift_k"],
        "A_ssm_k": _A_in["ssm_k"],
        "A_ssm_D": _A_in["ssm_D"],
        "B_x": _B_in["x"],
        "B_w1": _B_in["w1"],
        "B_w2": _B_in["w2"],
    }

def reference(A_q, A_k, A_v, A_shift_k, A_ssm_k, A_ssm_D, B_x, B_w1, B_w2):
    def _A_ref(q, k, v, shift_k, ssm_k, ssm_D):
        B, S, D = q.shape
        ks = shift_k.shape[-1]
        k_pad = _pad(k, ((0, 0), (ks - 1, 0), (0, 0)))
        k_shift = torch.zeros_like(k)
        for t in range(ks):
            k_shift = k_shift + k_pad[:, t:t + S, :] * shift_k[:, ks - 1 - t][None, None, :]
        kv = k_shift * v
        L = 2 * S
        kv_pad = _pad(kv, ((0, 0), (0, S), (0, 0)))
        kf_pad = _pad(ssm_k, ((0, 0), (0, S)))
        kv_f = (lambda x, axes=(-2,-1): torch.fft.rfft2(x.float(), dim=axes))(kv_pad[:, None, :, :], axes=(1, 2))
        kf_f = (lambda x, axes=(-2,-1): torch.fft.rfft2(x.float(), dim=axes))(kf_pad[:, None, :], axes=(1, 2))
        kf_f = (lambda x, *d: x.permute(*d))(kf_f, 1, 2, 0)
        y_f = kv_f * kf_f[None, :, :, :]
        y = (lambda x, s, axes=(-2,-1): torch.fft.irfft2(x, s=s, dim=axes).to(torch.bfloat16))(y_f, (1, L), axes=(1, 2))[:, 0, :S, :]
        y = y + kv * ssm_D[None, None, :]
        return q * y

    def _B_ref(x, w1, w2):
        h = torch.einsum("bsd,df->bsf", x, w1)
        zero = torch.zeros_like(h)
        h = torch.maximum(h, zero)
        return torch.einsum("bsf,fd->bsd", h, w2)

    x = A_q
    xn = _layernorm(x, axis=-1)
    return x + _A_ref(xn, A_k, A_v, A_shift_k, A_ssm_k, A_ssm_D) + _B_ref(xn, B_w1, B_w2)
```

```python
import re

class I:
    __slots__ = ("t", "tag", "kind")
    def __init__(self, t, tag=None, kind=None):
        self.t = t; self.tag = tag; self.kind = kind
    def __repr__(self): return self.t

def _regs(tok):
    tok = tok.strip()
    neg = tok.lstrip("-|").rstrip("|")
    m = re.fullmatch(r"abs\((.*)\)", neg)
    if m: neg = m.group(1)
    m = re.fullmatch(r"([vas])\[(\d+):(\d+)\]", neg)
    if m: return [f"{m.group(1)}{i}" for i in range(int(m.group(2)), int(m.group(3)) + 1)]
    m = re.fullmatch(r"([vas])(\d+)", neg)
    if m: return [neg]
    if neg == "vcc": return ["vcc"]
    if neg == "exec": return ["exec"]
    if neg == "m0": return ["m0"]
    return []

def parse(t):
    t = t.split(";")[0].strip()
    if not t or t.endswith(":") or t.startswith("."): return ("", [], [])
    p = t.split(None, 1)
    op = p[0]
    rest = p[1] if len(p) > 1 else ""
    ops = [o.strip() for o in re.split(r",(?![^\[]*\])", rest)]
    toks = []
    for o in ops:
        toks.append(o.split()[0] if o.split() else "")
    R = [_regs(x) for x in toks]
    dst, src = [], []
    if op.startswith(("buffer_store", "global_store", "ds_write", "buffer_atomic")):
        for r in R: src += r
    elif op.startswith(("buffer_load", "global_load")):
        if " lds" in t or op.startswith("global_load_lds"):
            for r in R: src += r
            src.append("m0")
        else:
            dst += R[0]
            for r in R[1:]: src += r
    elif op.startswith(("s_cmp", "s_cbranch", "s_branch", "s_waitcnt", "s_barrier", "s_nop", "s_sleep", "s_endpgm", "s_setprio")):
        for r in R: src += r
    elif op.startswith("v_cmp"):
        dst += R[0]
        for r in R[1:]: src += r
    elif op.startswith(("v_permlane32_swap", "v_permlane16_swap", "v_swap")):
        dst += R[0] + R[1]; src += R[0] + R[1]
    elif op.startswith(("v_add_co", "v_addc_co", "v_sub_co")):
        dst += R[0] + R[1]
        for r in R[2:]: src += r
    else:
        if R: dst += R[0]
        for r in R[1:]: src += r
        if op.startswith(("v_fmac", "v_dot2c", "v_writelane")) or "_dpp" in op: src += R[0]
        if op.startswith("v_cndmask") and len(R) == 3: src.append("vcc")
    return (op, dst, src)

def is_vmem(op): return op.startswith(("buffer_", "global_"))
def is_ds(op): return op.startswith("ds_")
def is_smem(op): return op.startswith(("s_load", "s_memtime", "s_memrealtime", "s_buffer_load"))
def is_mfma(op): return op.startswith("v_mfma")
def is_valu(op): return op.startswith("v_") and not is_mfma(op)
def is_trans(op): return re.match(r"v_(exp|log|rcp|rsq|sqrt|sin|cos)_", op) is not None
def mfma_passes(op):
    if "32x32x16" in op: return 8
    if "16x16x32" in op: return 4
    raise ValueError(op)

class Stream(list):
    def e(self, t, tag=None):
        for line in t.strip("\n").split("\n"):
            line = line.strip()
            if line: self.append(I(line, tag))
        return self
    def wvm(self, *tags): self.append(I("WVM " + " ".join(tags), kind="wvm")); return self
    def wlg(self, *tags): self.append(I("WLG " + " ".join(tags), kind="wlg")); return self
    def glue(self, t, tag=None):
        g = Stream().e(t, tag)
        self.append(list(g)); return self

def flatten(s):
    out = []
    for x in s:
        if isinstance(x, list): out += flatten(x)
        else: out.append(x)
    return out

def merge(main, *fill, lead=0, every=None):
    main = list(main)
    pos = [i for i, x in enumerate(main) if not isinstance(x, list) and x.t.startswith("v_mfma")]
    n = len(pos)
    slots = [[] for _ in range(n)]
    for f in fill:
        lo, hi = 0, n
        if isinstance(f, tuple): f, lo, hi = f
        f = list(f)
        m = len(f)
        for k, it in enumerate(f):
            slots[lo + (k * (hi - lo)) // max(m, 1)].append(it)
    out = Stream()
    si = 0
    for i, x in enumerate(main):
        out.append(x)
        if si < n and i == pos[si]:
            out += slots[si]; si += 1
    return out

def resolve_waits(ins):
    out = []
    vm = []
    lg = []
    smem_out = False
    vm_done = 0; lg_done = 0
    for x in ins:
        if x.kind == "wvm":
            tags = x.t.split()[1:]
            if tags == ["ALL"]: idx = len(vm) - 1
            else:
                c = [i for i, t in enumerate(vm) if t in tags]
                for t in tags: assert t in vm, f"wvm: tag {t} not issued"
                idx = max(c)
            if idx < vm_done and tags != ["ALL"]: continue
            n = len(vm) - 1 - idx
            out.append(I(f"s_waitcnt vmcnt({min(n, 63)})"))
            vm_done = len(vm) - min(n, 63)
            continue
        if x.kind == "wlg":
            tags = x.t.split()[1:]
            if tags == ["ALL"]: idx = len(lg) - 1
            else:
                c = [i for i, t in enumerate(lg) if t in tags]
                for t in tags: assert t in lg, f"wlg: tag {t} not issued"
                idx = max(c)
            if idx < lg_done and tags != ["ALL"]: continue
            n = len(lg) - 1 - idx
            if smem_out: n = 0; smem_out = False
            out.append(I(f"s_waitcnt lgkmcnt({min(n, 15)})"))
            lg_done = len(lg) - min(n, 15)
            continue
        op = x.t.split()[0]
        if x.kind != "cond":
            if is_vmem(op): vm.append(x.tag)
            elif is_ds(op): lg.append(x.tag)
            elif is_smem(op): smem_out = True; lg.append(x.tag)
        out.append(x)
    fused = []
    for x in out:
        if fused and x.t.startswith("s_waitcnt") and fused[-1].t.startswith("s_waitcnt"):
            a = dict(re.findall(r"(\w+)\((\d+)\)", fused[-1].t)); b = dict(re.findall(r"(\w+)\((\d+)\)", x.t))
            for k, v in b.items(): a[k] = str(min(int(v), int(a.get(k, 99))))
            fused[-1] = I("s_waitcnt " + " ".join(f"{k}({v})" for k, v in sorted(a.items(), reverse=True)))
        else: fused.append(x)
    return fused

def pad_hazards(ins, verbose=False):
    out = []
    hist = []
    total = 0
    def states(t):
        m = re.match(r"s_nop (\d+)", t)
        return int(m.group(1)) + 1 if m else 1
    for x in ins:
        op, dst, src = parse(x.t)
        if not op:
            out.append(x); continue
        need = 0
        dist = 0
        S, D = set(src), set(dst)
        for (pop, pd, ps, st, pt) in reversed(hist):
            req = 0
            pd_ = set(pd)
            if is_mfma(pop):
                P = mfma_passes(pop)
                pc = set(_regs(pt.split(",")[-1].split()[0]))
                if is_mfma(op):
                    toks = [o.strip() for o in re.split(r",(?![^\[]*\])", x.t.split(None, 1)[1])]
                    ab = set(_regs(toks[1]) + _regs(toks[2])); c = set(_regs(toks[3].split()[0]))
                    if pd_ & ab: req = max(req, {4: 8, 8: 12}[P])
                    if pd_ & c and not (pd_ == c and mfma_passes(op) == P): req = max(req, {4: 6, 8: 10}[P])
                    if pd_ & D and not (pd_ & c): req = max(req, {4: 8, 8: 12}[P])
                else:
                    if pd_ & (S | D): req = max(req, {4: 8, 8: 12}[P])
                    if is_valu(op) and pc & D: req = max(req, {4: 3, 8: 7}[P])
            elif is_valu(pop):
                vd = {r for r in pd_ if r[0] in "va" and r not in ("vcc",)}
                sd = {r for r in pd_ if r[0] == "s" or r == "vcc"}
                if is_mfma(op) and vd & S: req = max(req, 2)
                if is_mfma(op) and "exec" in pd_: req = max(req, 4)
                if is_valu(op):
                    if sd & S: req = max(req, 4 if op.startswith(("v_readlane", "v_writelane")) else 2)
                    if "_dpp" in op and vd & S: req = max(req, 2)
                    if op.startswith(("v_readlane", "v_readfirstlane")) and vd & S: req = max(req, 1)
                    if op.startswith("v_permlane") and vd & S: req = max(req, 2)
                    if is_trans(pop) and vd & S: req = max(req, 1)
                    if pop.startswith("v_dot") and vd & (S | D) and not (op == pop and not (vd & set(src[:-1])) ): req = max(req, 3)
                    if ("sdwa" in pop or "op_sel" in pt) and vd & (S | D): req = max(req, 1)
                if pop.startswith("v_dot") and not is_valu(op) and vd & S: req = max(req, 3)
                if is_vmem(op) and sd & S: req = max(req, 5)
                if op.startswith("s_") and sd & S and not op.startswith("s_cbranch"): req = max(req, 1)
            elif pop.startswith("s_"):
                if "m0" in pd_ and "m0" in S and is_vmem(op): req = max(req, 1)
            if pop.startswith(("buffer_store_dwordx4", "buffer_store_dwordx3", "global_store_dwordx4")):
                data = set(_regs(pt.split(None, 1)[1].split(",")[0])) if pop.startswith("buffer") else set()
                if data & D: req = max(req, 2)
            if req > dist: need = max(need, req - dist)
            dist += st
            if dist > 24: break
        while need > 0:
            k = min(need, 16)
            t = f"s_nop {k-1}"
            out.append(I(t)); hist.append(("s_nop", [], [], k, t)); need -= k; total += 1
        out.append(x)
        hist.append((op, dst, src, states(x.t), x.t))
        hist = hist[-30:]
    if verbose: print("; hazard nops inserted:", total)
    return out

class RegAlloc:
    def __init__(self, kind, lo, hi):
        self.kind = kind; self.free = set(range(lo, hi)); self.named = {}
    def alloc(self, name, n=1, align=1):
        if n > 1 and align == 1: align = 2
        for b in sorted(self.free, reverse=(n >= 8)):
            if b % align == 0 and all((b + i) in self.free for i in range(n)):
                for i in range(n): self.free.discard(b + i)
                self.named[name] = (b, n)
                return b
        raise RuntimeError(f"out of {self.kind} regs for {name} ({n})")
    def release(self, *names):
        for name in names:
            b, n = self.named.pop(name)
            for i in range(n): self.free.add(b + i)
```

```python
import sys
from asmlib import *

KN = "parallel_sum__ssm_conv_h3__dense_activation_relu__prompt_kernel"
XB = 2048 * 448 * 2
WB = 448 * 1792 * 2
WS_E = 0
WS_FL = 0x1000
WS_ST = 0x58000
WS_STAMP = 0x98000
WS_KVT = 0x100000
WS_Y2 = 0x2C0000
WS_H = 0x480000
WS_END = WS_H + 0x700000
SLOT = 32768
CA = 98304
CB = CA + 33280
MISC = 150016
L_CS = MISC
L_RS = MISC + 512
L_STT = MISC + 1024
LDS_SIZE = MISC + 1024 + 2048
P0K = CA; P0V = P0K + 9 * 1040; P0X = P0V + 8 * 1040
L_AP = 65536
LCG_A = 0x9E3779B1; LCG_C = 0x7F4A7C15

def gen(opt):
    diag = opt.get("diag", 0)
    V = RegAlloc("v", 1, 128)
    va = V.alloc
    AR = RegAlloc("v", 128, 256)
    aa = AR.alloc
    sX, sK, sV, sW1, sW2, sH, sWS, sO = 28, 32, 36, 40, 44, 48, 52, 56
    sW, sRB, sCB, sR, sHALF, sJ, sL, sTAG = 60, 61, 62, 63, 64, 65, 66, 67
    sXo, sWo, sSt, sW2o, sHo, sCnt, sM0a, sT0, sT1, sT2, sT3, sFLo = 68, 69, 70, 71, 72, 73, 74, 75, 76, 77, 78, 79
    srd = lambda n: f"s[{n}:{n+3}]"
    def mksrd(n, p, size):
        return f"s_mov_b32 s{n}, s{p}\ns_mov_b32 s{n+1}, s{p+1}\ns_mov_b32 s{n+2}, {size}\ns_mov_b32 s{n+3}, 0x20000"
    vr = lambda b, n: f"v[{b}:{b+n-1}]" if n > 1 else f"v{b}"
    ar = lambda b, n: f"a[{b}:{b+n-1}]" if n > 1 else f"a{b}"
    nstamp = [0]
    def stamp(s):
        if diag:
            i = nstamp[0]; nstamp[0] += 1
            assert i < 10
            s.e(f"s_memrealtime s[{80+2*i}:{81+2*i}]", tag="stamp")
    tail = Stream()
    npoll = [0]
    def poll_check(s, vP, vA, vT, tag):
        k = npoll[0]; npoll[0] += 1
        s.wvm(tag)
        s.glue(f"v_cmp_ne_u32 vcc, v{vP}, v{vT}\ns_cbranch_vccnz RETRY{k}\nOK{k}:")
        for t in f"""RETRY{k}:
s_mov_b32 s{sCnt}, 200000
RL{k}:
s_sleep 1
buffer_load_dword v{vP}, v{vA}, {srd(sWS)}, 0 offen sc1
s_sub_u32 s{sCnt}, s{sCnt}, 1
s_cmp_eq_u32 s{sCnt}, 0
s_cbranch_scc1 OK{k}
s_waitcnt vmcnt(0)
v_cmp_ne_u32 vcc, v{vP}, v{vT}
s_cbranch_vccnz RL{k}
s_branch OK{k}""".split("\n"):
            tail.append(I(t, kind="cond"))

    P = Stream()
    vL = 0
    t0, t1, t2, t3 = va("t0"), va("t1"), va("t2"), va("t3")
    if diag: stamp(P)
    P.e(f"""
s_load_dwordx16 s[4:19], s[0:1], 0
s_load_dwordx8 s[20:27], s[0:1], 64""", tag="karg")
    P.e(f"""
v_lshrrev_b32 v{t0}, 6, v0
s_cmp_ge_u32 s2, 256
s_cbranch_scc1 END
v_readfirstlane_b32 s{sW}, v{t0}
s_cmp_lt_u32 s2, 32
s_cbranch_scc1 HELPER
v_and_b32 v0, 63, v0
s_sub_u32 s3, s2, 32
s_and_b32 s{sT0}, s3, 7
s_lshr_b32 s{sT1}, s3, 3
s_mul_i32 s{sT2}, s{sT1}, 37
s_lshr_b32 s{sT2}, s{sT2}, 8
s_mul_i32 s{sT3}, s{sT2}, 7
s_sub_u32 s{sCB}, s{sT1}, s{sT3}""")
    if opt.get("map", "B") == "B":
        P.e(f"""
s_lshr_b32 s{sR}, s{sT0}, 1
s_lshl_b32 s{sR}, s{sR}, 2
s_add_u32 s{sR}, s{sR}, s{sT2}
s_and_b32 s{sHALF}, s{sT0}, 1""")
    else:
        P.e(f"""
s_lshl_b32 s{sR}, s{sT0}, 1
s_lshr_b32 s{sT3}, s{sT2}, 1
s_add_u32 s{sR}, s{sR}, s{sT3}
s_and_b32 s{sHALF}, s{sT2}, 1""")
    vP0, vP1 = va("P0"), va("P1")
    vl3, vl7 = va("l3"), va("l7")
    P.e(f"""
s_lshl_b32 s{sRB}, s{sR}, 1
s_add_u32 s{sRB}, s{sRB}, s{sHALF}
s_mul_i32 s{sJ}, s{sHALF}, 7
s_add_u32 s{sJ}, s{sJ}, s{sCB}
s_mul_i32 s{sL}, s{sR}, 14
s_add_u32 s{sL}, s{sL}, s{sJ}
v_lshrrev_b32 v{vl3}, 3, v0
v_and_b32 v{vl7}, 7, v0
v_mul_u32_u24 v{vP0}, 896, v{vl3}
v_lshl_add_u32 v{vP0}, v{vl7}, 4, v{vP0}
v_add_u32 v{vP1}, {7168-1040}, v{vP0}
s_lshl_b32 s{sT0}, s{sRB}, 2
s_add_u32 s{sT0}, s{sT0}, s{sW}
s_mul_i32 s{sT0}, s{sT0}, {16*896}
s_lshl_b32 s{sT1}, s{sCB}, 7
s_add_u32 s{sT0}, s{sT0}, s{sT1}
s_mul_i32 s{sT2}, s{sW}, 2080
s_add_u32 s{sT2}, s{sT2}, {P0K+1040}
s_mov_b32 m0, s{sT2}""")
    P.wlg("karg")
    P.e(mksrd(sK, 6, XB))
    P.e(f"""
buffer_load_dwordx4 v{vP0}, {srd(sK)}, s{sT0} offen lds
buffer_load_dwordx4 v{vP1}, {srd(sK)}, s{sT0} offen offset:1040 lds""", tag="p0")
    P.e(f"s_add_u32 m0, s{sT2}, {P0V-P0K-1040}")
    P.e(mksrd(sV, 8, XB))
    P.e(f"""
buffer_load_dwordx4 v{vP0}, {srd(sV)}, s{sT0} offen lds
buffer_load_dwordx4 v{vP1}, {srd(sV)}, s{sT0} offen offset:1040 lds""", tag="p0")
    P.e(f"s_add_u32 m0, s{sT2}, {P0X-P0K-1040}")
    P.e(mksrd(sX, 4, XB))
    P.e(f"""
buffer_load_dwordx4 v{vP0}, {srd(sX)}, s{sT0} offen lds
buffer_load_dwordx4 v{vP1}, {srd(sX)}, s{sT0} offen offset:1040 lds""", tag="p0")
    P.e(f"""
s_cmp_lg_u32 s{sW}, 0
s_cbranch_scc1 NOHALO
s_cmp_eq_u32 s{sRB}, 0
s_cselect_b32 s{sT1}, 0x40000000, 0
s_cselect_b32 s{sT3}, 0, 7168
s_sub_u32 s{sT3}, s{sT0}, s{sT3}
v_add_u32 v{t0}, s{sT1}, v{vP0}
s_mov_b32 m0, {P0K}
s_nop 0""")
    P.append(I(f"buffer_load_dwordx4 v{t0}, {srd(sK)}, s{sT3} offen lds", kind="cond"))
    P.e("NOHALO:")
    vTap = va("tap", 4, 4); vDd = va("Dd")
    vT = [va(f"T{i}") for i in range(4)]; vA = [va(f"A{i}") for i in range(4)]
    vPair = va("pair")
    P.e(mksrd(sWS, 26, WS_END))
    P.e(f"""
s_lshl_b32 s{sT1}, s{sW}, 3
v_add_u32 v{vPair}, s{sT1}, v{vl3}
s_lshl_b32 s{sT1}, s{sCB}, 5
v_add_u32 v{t1}, s{sT1}, v{vPair}
v_lshlrev_b32 v{t2}, 4, v{t1}
v_lshlrev_b32 v{t1}, 2, v{t1}""")
    P.e(f"""
global_load_dwordx4 {vr(vTap,4)}, v{t2}, s[10:11]
global_load_dword v{vDd}, v{t1}, s[14:15]""", tag="p0")
    P.e(f"""
v_sub_u32 v{t1}, 31, v{vPair}
v_mul_u32_u24 v{t1}, 7, v{t1}
v_add_lshl_u32 v{vA[0]}, v{t1}, s{sCB}, 2
v_mul_u32_u24 v{t1}, 7, v{vPair}
v_add_lshl_u32 v{vA[2]}, v{t1}, s{sCB}, 2
v_min_u32 v{t1}, 6, v0
s_mul_i32 s{sT1}, s{sW}, 7
v_add_u32 v{t1}, s{sT1}, v{t1}
v_lshrrev_b32 v{t2}, 1, v{t1}
s_mul_i32 s{sT1}, s{sR}, 14
v_add_lshl_u32 v{vA[1]}, v{t2}, s{sT1}, 2
v_min_u32 v{t2}, 27, v0
v_lshrrev_b32 v{t3}, 2, v{t2}
s_mul_i32 s{sT1}, s{sRB}, 7
v_add_lshl_u32 v{vA[3]}, v{t3}, s{sT1}, 2""")
    for i in range(4):
        P.e(f"buffer_load_dword v{vT[i]}, v{vA[i]}, {srd(sWS)}, 0 offen sc1", tag="p0")
    P.e(f"""
s_lshr_b32 s{sT1}, s{sRB}, 3
v_add_lshl_u32 v{vA[0]}, v{vA[0]}, s{sT1}, 7
v_add_lshl_u32 v{vA[2]}, v{vA[2]}, s{sT1}, 7
v_and_b32 v{t1}, 1, v{t1}
s_lshl_b32 s{sT1}, s{sHALF}, 1
v_add3_u32 v{vA[1]}, v{vA[1]}, v{t1}, s{sT1}
v_lshlrev_b32 v{vA[1]}, 7, v{vA[1]}
v_and_b32 v{t2}, 3, v{t2}
v_add_lshl_u32 v{vA[3]}, v{vA[3]}, v{t2}, 7
v_add_u32 v{vA[0]}, {WS_FL}, v{vA[0]}
v_add_u32 v{vA[3]}, {WS_FL}, v{vA[3]}
v_add_u32 v{vA[1]}, {WS_FL + 224*512}, v{vA[1]}
v_add_u32 v{vA[2]}, {WS_FL + 2*224*512}, v{vA[2]}
s_lshl_b32 s{sFLo}, s{sL}, 2
s_add_u32 s{sFLo}, s{sFLo}, s{sW}
s_lshl_b32 s{sFLo}, s{sFLo}, 7
s_add_u32 s{sFLo}, s{sFLo}, {WS_FL}""")
    vDX = [va(f"DX{q}") for q in range(4)]; vDW = [va(f"DW{q}") for q in range(4)]
    vl4 = va("l4")
    P.e(mksrd(sW1, 18, WB))
    P.e(f"""
v_lshrrev_b32 v{vl4}, 4, v0
v_mul_u32_u24 v{t0}, 896, v{vl3}
v_xor_b32 v{t1}, v{vl7}, v{vl4}
v_lshl_add_u32 v{vDX[0]}, v{t1}, 4, v{t0}
v_xor_b32 v{t1}, 4, v{t1}
v_lshl_add_u32 v{vDX[1]}, v{t1}, 4, v{t0}
v_add_u32 v{vDX[2]}, {2*6144}, v{vDX[0]}
v_add_u32 v{vDX[3]}, {3*6144}, v{vDX[1]}
v_add_u32 v{vDX[1]}, {6144}, v{vDX[1]}
v_mul_u32_u24 v{t0}, 3584, v{vl4}
v_and_b32 v{t1}, 15, v0
v_lshlrev_b32 v{t2}, 2, v{vl4}
v_xor_b32 v{t1}, v{t1}, v{t2}
v_lshl_add_u32 v{vDW[0]}, v{t1}, 4, v{t0}
v_add_u32 v{vDW[1]}, {4*3584-1024}, v{vDW[0]}
v_add_u32 v{vDW[2]}, {2*(4*3584-1024)}, v{vDW[0]}
v_add_u32 v{vDW[3]}, {3*(4*3584-1024)}, v{vDW[0]}
s_lshl_b32 s{sXo}, s{sR}, 2
s_add_u32 s{sXo}, s{sXo}, s{sW}
s_mul_i32 s{sXo}, s{sXo}, {32*896}
s_mul_i32 s{sWo}, s{sW}, {16*3584}
s_lshl_b32 s{sT1}, s{sJ}, 8
s_add_u32 s{sWo}, s{sWo}, s{sT1}
s_lshl_b32 s{sM0a}, s{sW}, 12""")
    if opt.get("rot", 1):
        P.e(f"""
s_add_u32 s{sSt}, s{sR}, s{sCB}
s_mul_i32 s{sT1}, s{sSt}, 37
s_lshr_b32 s{sT1}, s{sT1}, 8
s_mul_i32 s{sT1}, s{sT1}, 7
s_sub_u32 s{sSt}, s{sSt}, s{sT1}
s_lshl_b32 s{sT1}, s{sSt}, 7
s_add_u32 s{sXo}, s{sXo}, s{sT1}
s_mul_i32 s{sT1}, s{sSt}, {64*3584}
s_add_u32 s{sWo}, s{sWo}, s{sT1}""")
    else:
        P.e(f"s_mov_b32 s{sSt}, 0")
    def g1_dma(i):
        s = Stream(); sl = i % 3
        s.glue(f"s_add_u32 m0, s{sM0a}, {sl*SLOT}\ns_add_u32 s{sSt}, s{sSt}, 1\nbuffer_load_dwordx4 v{vDX[0]}, {srd(sX)}, s{sXo} offen lds", tag=f"g1d{i}")
        for q in range(1, 4): s.e(f"buffer_load_dwordx4 v{vDX[q]}, {srd(sX)}, s{sXo} offen offset:{q*1024} lds", tag=f"g1d{i}")
        s.glue(f"s_add_u32 m0, s{sM0a}, {sl*SLOT+16384}\ns_add_u32 s{sXo}, s{sXo}, 128\nbuffer_load_dwordx4 v{vDW[0]}, {srd(sW1)}, s{sWo} offen lds", tag=f"g1d{i}")
        for q in range(1, 4): s.e(f"buffer_load_dwordx4 v{vDW[q]}, {srd(sW1)}, s{sWo} offen offset:{q*1024} lds", tag=f"g1d{i}")
        if i < 6:
            s.glue(f"""s_add_u32 s{sWo}, s{sWo}, {64*3584}
s_cmp_eq_u32 s{sSt}, 7
s_cselect_b32 s{sT0}, 896, 0
s_cselect_b32 s{sT1}, {448*3584}, 0
s_sub_u32 s{sXo}, s{sXo}, s{sT0}
s_sub_u32 s{sWo}, s{sWo}, s{sT1}""")
        return s
    P += g1_dma(0)
    stamp(P)
    vXA = [[va(f"XA{h}{k}") for k in range(4)] for h in range(2)]
    vWA = [[va(f"WA{h}{k}") for k in range(2)] for h in range(2)]
    vl5 = va("l5"); vr_ = va("r"); vSel = va("sel", 4, 4)
    P.e(mksrd(sW2, 20, WB)); P.e(mksrd(sH, 12, XB)); P.e(mksrd(sO, 22, XB))
    P.e(f"""
v_lshrrev_b32 v{vl5}, 5, v0
v_and_b32 v{t0}, 31, v0
v_lshlrev_b32 v{t0}, 7, v{t0}
s_lshr_b32 s{sT0}, s{sW}, 1
s_lshl_b32 s{sT0}, s{sT0}, 13
v_add_u32 v{t0}, s{sT0}, v{t0}
v_bfe_u32 v{t1}, v0, 1, 3
v_xor_b32 v{t1}, v{t1}, v{vl5}""")
    for k in range(4):
        P.e(f"""
v_xor_b32 v{t2}, {2*k}, v{t1}
v_lshl_add_u32 v{vXA[0][k]}, v{t2}, 4, v{t0}
v_add_u32 v{vXA[1][k]}, 0x10000, v{vXA[0][k]}""")
    vlo = va("lo")
    P.e(f"""
v_bfe_u32 v{vr_}, v0, 2, 2
v_and_b32 v{t0}, 3, v0
v_lshlrev_b32 v{vlo}, 3, v{t0}
v_and_b32 v{t0}, 16, v0
v_lshl_add_u32 v{vlo}, v{t0}, 1, v{vlo}
v_lshl_add_u32 v{t0}, v{vl5}, 3, v{vr_}
v_lshl_add_u32 v{t0}, v{t0}, 8, v{vlo}
v_add_u32 v{t0}, 16384, v{t0}
s_and_b32 s{sT0}, s{sW}, 1
s_lshl_b32 s{sT0}, s{sT0}, 1
v_xor_b32 v{t1}, s{sT0}, v{vr_}
v_lshl_add_u32 v{vWA[0][0]}, v{t1}, 6, v{t0}
v_xor_b32 v{t1}, 1, v{t1}
v_lshl_add_u32 v{vWA[0][1]}, v{t1}, 6, v{t0}
v_add_u32 v{vWA[1][0]}, 0x10000, v{vWA[0][0]}
v_add_u32 v{vWA[1][1]}, 0x10000, v{vWA[0][1]}""")
    P.e(f"""
v_lshrrev_b32 v{t0}, 2, v0
v_xor_b32 v{t0}, v{t0}, v{vl4}
v_and_b32 v{t0}, 1, v{t0}
v_cmp_eq_u32 vcc, 0, v{t0}
v_mov_b32 v{t1}, 0x3f803f80
v_cndmask_b32 v{vSel}, 0, v{t1}, vcc
v_mov_b32 v{vSel+1}, v{vSel}
v_mov_b32 v{vSel+2}, v{vSel}
v_mov_b32 v{vSel+3}, v{vSel}""")
    vK0, vK1, vS0 = va("K0"), va("K1"), va("S0")
    P.e(f"""
v_mul_u32_u24 v{t0}, 1040, v{vl7}
v_lshl_add_u32 v{vK0}, v{vPair}, 2, v{t0}
v_add_u32 v{vK0}, {P0K}, v{vK0}
v_add_u32 v{vK1}, 1040, v{vK0}
v_lshrrev_b32 v{t0}, 5, v0
s_lshl_b32 s{sT0}, s{sW}, 1
v_add_u32 v{t0}, s{sT0}, v{t0}
v_mul_u32_u24 v{t0}, 1040, v{t0}
v_and_b32 v{t1}, 31, v0
v_lshl_add_u32 v{vS0}, v{t1}, 5, v{t0}
v_add_u32 v{vS0}, {P0X}, v{vS0}""")
    vXP = va("XP", 8); vKD = va("KD", 16)
    kraw = aa("kraw", 12); vraw = aa("vraw", 8); kf = aa("kf", 22); tf = aa("tf", 8); df = aa("df", 2); acc0 = aa("acc0", 16)
    sx = aa("sx", 8, 4); pk = aa("pk", 8, 4); vf = aa("vf", 2)
    P.wvm("p0")
    P.e("s_barrier")
    stamp(P)
    Z = Stream()
    Z.e(f"""
ds_read2_b32 {vr(kraw,2)}, v{vK0} offset0:160 offset1:192
ds_read_b32 v{kraw+2}, v{vK0} offset:896""", tag="k")
    for i in range(4): Z.e(f"ds_read2_b32 {vr(kraw+4+2*i,2)}, v{vK1} offset0:{64*i} offset1:{64*i+32}", tag="k")
    Z.e(f"v_add_u32 v{vK0}, {P0V-P0K}, v{vK0}\nv_add_u32 v{vK1}, {P0X-P0K-1040}, v{vK1}")
    for i in range(4): Z.e(f"ds_read2_b32 {vr(vraw+2*i,2)}, v{vK0} offset0:{64*i} offset1:{64*i+32}", tag="v")
    Z.e(f"ds_read_b128 {vr(sx,4)}, v{vS0}\nds_read_b128 {vr(sx+4,4)}, v{vS0} offset:16", tag="sx")
    for i in range(4): Z.e(f"ds_read2_b32 {vr(vXP+2*i,2)}, v{vK1} offset0:{64*i} offset1:{64*i+32}", tag="xp")
    Z.e(f"s_mov_b32 s{sT2}, {LCG_A}\nv_mov_b32 v{t0}, {LCG_C}")
    for i in range(4): Z.e(f"v_mul_lo_u32 v{vT[i]}, v{vT[i]}, s{sT2}\nv_add_u32 v{vT[i]}, v{vT[i]}, v{t0}")
    for c in range(2):
        for h in range(2):
            Z.e(f"v_lshlrev_b32 v{tf+2*(2*h)+c}, 16, v{vTap+2*c+h}\nv_and_b32 v{tf+2*(2*h+1)+c}, 0xffff0000, v{vTap+2*c+h}")
    Z.e(f"v_lshlrev_b32 v{df}, 16, v{vDd}\nv_and_b32 v{df+1}, 0xffff0000, v{vDd}")
    Z.wlg("k")
    kreg = [kraw, kraw+1, kraw+2] + [kraw+4+i for i in range(8)]
    for i in range(11):
        Z.e(f"v_lshlrev_b32 v{kf+2*i}, 16, v{kreg[i]}\nv_and_b32 v{kf+2*i+1}, 0xffff0000, v{kreg[i]}")
    for i in range(8): Z.e(f"v_pk_mul_f32 {vr(acc0+2*i,2)}, {vr(kf+2*i,2)}, {vr(tf+6,2)}")
    for t in (2, 1, 0):
        for i in range(8): Z.e(f"v_pk_fma_f32 {vr(acc0+2*i,2)}, {vr(kf+2*(i+3-t),2)}, {vr(tf+2*t,2)}, {vr(acc0+2*i,2)}")
    Z.wlg("v")
    for i in range(8):
        Z.e(f"v_lshlrev_b32 v{kf+2*i}, 16, v{vraw+i}\nv_and_b32 v{kf+2*i+1}, 0xffff0000, v{vraw+i}")
    for i in range(8): Z.e(f"v_pk_mul_f32 {vr(acc0+2*i,2)}, {vr(acc0+2*i,2)}, {vr(kf+2*i,2)}")
    for c in range(2):
        for d in range(4): Z.e(f"v_cvt_pk_bf16_f32 v{pk+4*c+d}, v{acc0+2*(7-2*d)+c}, v{acc0+2*(6-2*d)+c}")
    Z.e(f"""
v_sub_u32 v{t0}, 7, v{vl7}
v_lshlrev_b32 v{t0}, 4, v{t0}
v_lshl_add_u32 v{t0}, v{vPair}, 13, v{t0}
v_add_u32 v{t1}, 4096, v{t0}
s_lshl_b32 s{sT2}, s{sCB}, 18
s_lshl_b32 s{sT3}, s{sRB}, 7
s_sub_u32 s{sT2}, s{sT2}, s{sT3}
s_add_u32 s{sT2}, s{sT2}, {WS_KVT + 248*16}""")
    Z.e(f"""
buffer_store_dwordx4 {vr(pk,4)}, v{t0}, {srd(sWS)}, s{sT2} offen sc1
buffer_store_dwordx4 {vr(pk+4,4)}, v{t1}, {srd(sWS)}, s{sT2} offen sc1""", tag="p0st")
    Z.wlg("sx")
    Z.e(f"v_mov_b32 v{t2}, 0x3f803f80\nv_mov_b32 v{vf}, 0\nv_mov_b32 v{vf+1}, 0")
    for i in range(8):
        Z.e(f"v_dot2_f32_bf16 v{vf}, v{sx+i}, v{t2}, v{vf}\nv_dot2_f32_bf16 v{vf+1}, v{sx+i}, v{sx+i}, v{vf+1}")
    for i in range(8): Z.e(f"v_pk_mul_f32 {vr(vKD+2*i,2)}, {vr(acc0+2*i,2)}, {vr(df,2)}")
    for perm in ("[1,0,3,2]", "[2,3,0,1]"):
        Z.e(f"""v_add_f32_dpp v{vf}, v{vf}, v{vf} quad_perm:{perm} row_mask:0xf bank_mask:0xf
v_add_f32_dpp v{vf+1}, v{vf+1}, v{vf+1} quad_perm:{perm} row_mask:0xf bank_mask:0xf""")
    Z.e(f"""
v_and_b32 v{t2}, 1, v0
v_cmp_eq_u32 vcc, 1, v{t2}
v_lshlrev_b32 v{t2}, 2, v0
s_lshl_b32 s{sT2}, s{sL}, 2
s_add_u32 s{sT2}, s{sT2}, s{sW}
s_lshl_b32 s{sT2}, s{sT2}, 8
s_add_u32 s{sT2}, s{sT2}, {WS_ST}
v_cndmask_b32 v{vf}, v{vf}, v{vf+1}, vcc""")
    Z.e(f"buffer_store_dword v{vf}, v{t2}, {srd(sWS)}, s{sT2} offen sc1", tag="p0st")
    d1 = list(g1_dma(1))
    step = len(Z) // (len(d1) + 2)
    k = 0
    for i, x in enumerate(Z):
        P.append(x)
        if i % step == step - 1 and k < len(d1): P.append(d1[k]); k += 1
    P += d1[k:]
    P.wlg("ALL")
    AR.release("kraw", "vraw", "kf", "tf", "df", "acc0", "sx", "pk", "vf")
    V.release("tap", "Dd", "K0", "K1", "S0", "P0", "P1")
    vTagV = va("tagv"); vZero = va("zero", 4, 4); vl16 = va("l16")
    P.e(f"s_lshl_b32 s{sT2}, s{sCB}, 2\nv_readlane_b32 s{sTAG}, v{vT[3]}, s{sT2}\nv_lshlrev_b32 v{vl16}, 4, v0\nv_mov_b32 v{vTagV}, s{sTAG}")
    for i in range(4): P.e(f"v_mov_b32 v{vZero+i}, 0")
    stamp(P)
    def publish(phase, tag):
        s = Stream()
        s.wvm(tag)
        s.glue(f"s_mov_b64 exec, 1\ns_add_u32 s{sT3}, s{sFLo}, {phase*224*512}\nbuffer_store_dword v{vTagV}, v{vZero}, {srd(sWS)}, s{sT3} offen sc1\ns_mov_b64 exec, -1", tag="flag")
        return s

    acc = aa("acc", 64, 4)
    fx = aa("fx", 32, 4); fw = fx + 16
    sacc = aa("sacc", 8, 4)
    for i in range(64): P.e(f"v_mov_b32 v{acc+i}, 0")
    for i in range(8): P.e(f"v_mov_b32 v{sacc+i}, 0")
    P.e(f"""
s_and_b32 s{sT0}, s{sW}, 1
s_lshl_b32 s{sT0}, s{sT0}, 12""")
    vXB = [[va(f"XB{h}{k}") for k in range(4)] for h in range(2)]
    for h in range(2):
        for k in range(4):
            P.e(f"v_add_u32 v{vXA[h][k]}, s{sT0}, v{vXA[h][k]}\nv_xor_b32 v{vXB[h][k]}, 0x1000, v{vXA[h][k]}")
    P.e(f"s_lshr_b32 s{sT0}, s{sW}, 1\ns_lshl_b32 s{sT0}, s{sT0}, 6")
    for h in range(2):
        for k in range(2): P.e(f"v_xor_b32 v{vWA[h][k]}, s{sT0}, v{vWA[h][k]}")
    def g1_reads(i, ks):
        s = Stream(); sl = i % 3; h = 1 if sl == 2 else 0; base = (sl % 2) * SLOT if sl < 2 else 0
        b = (4 * i + ks) % 2; tg = f"fr{i}_{ks}"
        s.e(f"ds_read_b128 {vr(fx+8*b,4)}, v{vXA[h][ks]} offset:{base}", tag=tg)
        for hh in range(2): s.e(f"ds_read_b64_tr_b16 {vr(fw+8*b+2*hh,2)}, v{vWA[h][0]} offset:{base+ks*4096+hh*1024}", tag=tg)
        s.e(f"ds_read_b128 {vr(fx+8*b+4,4)}, v{vXB[h][ks]} offset:{base}", tag=tg)
        for hh in range(2): s.e(f"ds_read_b64_tr_b16 {vr(fw+8*b+4+2*hh,2)}, v{vWA[h][1]} offset:{base+ks*4096+hh*1024}", tag=tg)
        return s
    def g1_mfma(i, ks):
        s = Stream(); b = (4 * i + ks) % 2
        for (f, st) in ((0, 0), (0, 1), (1, 0), (1, 1)):
            a = acc + (2*f+st)*16
            s.e(f"v_mfma_f32_32x32x16_bf16 {vr(a,16)}, {vr(fw+8*b+4*f,4)}, {vr(fx+8*b+4*st,4)}, {vr(a,16)}")
            if (f, st) == (0, 0): s.e(f"v_mfma_f32_16x16x32_bf16 {vr(sacc,4)}, {vr(vSel,4)}, {vr(fx+8*b,4)}, {vr(sacc,4)}")
            if (f, st) == (1, 0): s.e(f"v_mfma_f32_16x16x32_bf16 {vr(sacc+4,4)}, {vr(vSel,4)}, {vr(fw+8*b,4)}, {vr(sacc+4,4)}")
        return s
    vD2 = [va(f"D2{q}") for q in range(4)]; vW2A = [[va(f"W2A{h}{d}") for d in range(2)] for h in range(2)]
    setup2 = Stream()
    setup2.e(f"""
v_mul_u32_u24 v{t0}, 896, v{vl3}
v_and_b32 v{t1}, 1, v{vl4}
v_lshlrev_b32 v{t1}, 2, v{t1}
v_xor_b32 v{t1}, v{t1}, v{vl7}
v_lshl_add_u32 v{vD2[0]}, v{t1}, 4, v{t0}
v_add_u32 v{vD2[1]}, 6144, v{vD2[0]}
v_add_u32 v{vD2[2]}, {2*6144}, v{vD2[0]}
v_add_u32 v{vD2[3]}, {3*6144}, v{vD2[0]}
s_mul_i32 s{sW2o}, s{sW}, {448*896}
s_lshl_b32 s{sT2}, s{sCB}, 7
s_add_u32 s{sW2o}, s{sW2o}, s{sT2}
v_lshl_add_u32 v{t0}, v{vl5}, 2, v{vr_}
v_lshl_add_u32 v{t0}, v{t0}, 7, v{vlo}
s_lshl_b32 s{sT2}, s{sW}, 13
v_add_u32 v{t0}, s{sT2}, v{t0}
v_lshrrev_b32 v{t1}, 1, v{vr_}
v_lshl_add_u32 v{vW2A[0][0]}, v{t1}, 6, v{t0}
v_xor_b32 v{vW2A[0][1]}, 64, v{vW2A[0][0]}
v_add_u32 v{vW2A[1][0]}, 0x10000, v{vW2A[0][0]}
v_add_u32 v{vW2A[1][1]}, 0x10000, v{vW2A[0][1]}""")
    W2BUF = [SLOT, SLOT + 4096, 2*SLOT, 2*SLOT + 4096, 0, 4096]
    def w2_dma(g):
        s = Stream(); b = W2BUF[g % 6]
        if g >= 6: s.wlg(f"w2r{g-6}")
        s.glue(f"s_lshl_b32 s{sT2}, s{sM0a}, 1\ns_add_u32 m0, s{sT2}, {b}\ns_nop 0\nbuffer_load_dwordx4 v{vD2[0]}, {srd(sW2)}, s{sW2o} offen lds", tag=f"w2d{g}")
        for q in range(1, 4): s.e(f"buffer_load_dwordx4 v{vD2[q]}, {srd(sW2)}, s{sW2o} offen offset:{q*1024} lds", tag=f"w2d{g}")
        s.e(f"s_add_u32 s{sW2o}, s{sW2o}, {32*896}")
        return s
    def w2_read(g):
        s = Stream(); b = W2BUF[g % 6]; h = 1 if b >= 65536 else 0; b -= h * 65536
        s.wvm(f"w2d{g}")
        for kbl in range(2):
            for dt in range(2):
                a = ((2*g + kbl) * 2 + dt) * 4
                for hh in range(2):
                    s.e(f"ds_read_b64_tr_b16 {ar(a+2*hh,2)}, v{vW2A[h][dt]} offset:{b + kbl*2048 + hh*1024}", tag=f"w2r{g}")
        return s
    vHd = va("hd"); vHa = va("ha")
    def convA():
        s = Stream()
        s.e(f"""
s_lshr_b32 s{sT2}, s{sW}, 1
s_lshl_b32 s{sT3}, s{sCB}, 5
s_add_u32 s{sT3}, s{sT3}, s{sRB}
s_lshl_b32 s{sT3}, s{sT3}, 1
s_add_u32 s{sT3}, s{sT3}, s{sT2}
s_lshl_b32 s{sHo}, s{sT3}, 12
v_and_b32 v{t0}, 15, v0
v_add_u32 v{t0}, v{t0}, v{vl4}
v_subrev_u32 v{t0}, 15, v{t0}
v_lshlrev_b32 v{t1}, 2, v{t0}
v_lshrrev_b32 v{t0}, 1, v{t0}
v_and_b32 v{t0}, 0x40000000, v{t0}
v_and_b32 v{t1}, 0xff, v{t1}
v_or_b32 v{t1}, v{t1}, v{t0}""")
        s.e(f"buffer_load_dword v{vHd}, v{t1}, {srd(sH)}, s{sHo} offen", tag="hd")
        s.e(f"""
s_mul_i32 s{sT2}, s{sT2}, 16640
v_mul_u32_u24 v{t0}, 4160, v{vl4}
v_and_b32 v{t1}, 15, v0
v_lshl_add_u32 v{t0}, v{t1}, 2, v{t0}
s_add_u32 s{sT2}, s{sT2}, {CA}
v_add_u32 v{vHa}, s{sT2}, v{t0}
s_and_b32 s{sT3}, s{sW}, 1
s_lshl_b32 s{sT3}, s{sT3}, 3
s_add_u32 s{sHo}, s{sHo}, s{sT3}
s_add_u32 s{sHo}, s{sHo}, 4""")
        for c in range(2):
            s.glue(f"s_mul_i32 s{sT2}, s{sW}, 8320\ns_add_u32 m0, s{sT2}, {CA + 64 + c*4160}\ns_nop 0\nbuffer_load_dwordx4 v{vl16}, {srd(sH)}, s{sHo} offen lds", tag="ca")
            for q in range(1, 4): s.e(f"buffer_load_dwordx4 v{vl16}, {srd(sH)}, s{sHo} offen offset:{q*1024} lds", tag="ca")
            if c == 0: s.e(f"s_add_u32 s{sHo}, s{sHo}, 4")
        s.e(f"""
v_min_u32 v{t0}, 29, v0
v_lshlrev_b32 v{t0}, 4, v{t0}
s_mul_i32 s{sT2}, s{sW}, 4576
s_add_u32 s{sT2}, s{sT2}, {CB + 4096}
v_add_u32 v{t0}, s{sT2}, v{t0}""")
        s.e(f"ds_write_b128 v{t0}, {vr(vZero,4)}", tag="bz")
        return s
    vPl = [va("pl0"), va("pl1")]
    vU = va("u", 8, 4); vUn = va("un", 2); vSt = va("st", 16, 4)
    def u_loads():
        s = Stream()
        poll_check(s, vPl[0], vA[0], vT[0], "poll0")
        s.e(f"""
s_lshl_b32 s{sT3}, s{sCB}, 5
s_add_u32 s{sT3}, s{sT3}, s{sRB}
s_lshl_b32 s{sT3}, s{sT3}, 13
s_lshl_b32 s{sT2}, s{sW}, 10
s_add_u32 s{sT3}, s{sT3}, s{sT2}
s_add_u32 s{sT3}, s{sT3}, {WS_KVT}
s_add_u32 s{sT2}, s{sT3}, 4096""")
        s.e(f"""
buffer_load_dwordx4 {vr(vU,4)}, v{vl16}, {srd(sWS)}, s{sT3} offen sc1
buffer_load_dwordx4 {vr(vU+4,4)}, v{vl16}, {srd(sWS)}, s{sT2} offen sc1""", tag="u")
        return s
    def st_loads():
        s = Stream()
        poll_check(s, vPl[1], vA[3], vT[3], "poll3")
        s.e(f"s_mul_i32 s{sT3}, s{sRB}, 7168\ns_add_u32 s{sT3}, s{sT3}, {WS_ST}\ns_add_u32 s{sT2}, s{sT3}, 4096")
        for c in range(7):
            s.e(f"buffer_load_dwordx2 {vr(vSt+2*c,2)}, v{vl16}, {srd(sWS)}, s{sT3 if c < 4 else sT2} offen offset:{(c%4)*1024} sc1", tag="st")
        return s

    P += g1_dma(2)
    P.wvm("g1d0"); P.e("s_barrier")
    P += g1_reads(0, 0)
    pending = []
    for i in range(7):
        for ks in range(4):
            P.wlg(f"fr{i}_{ks}")
            fill = []
            if ks < 3:
                fill.append((g1_reads(i, ks + 1), 0, 5))
            else:
                if i < 6:
                    P.wvm(f"g1d{i+1}")
                P.e("s_barrier")
                if i < 6: fill.append((g1_reads(i + 1, 0), 0, 5))
                assert not pending
                if i + 3 <= 6: pending = list(g1_dma(i + 3))
                if i == 0: pending = list(publish(0, "p0st")) + pending
                if i == 2: pending += list(setup2)
                if i == 3: pending += list(convA())
                if i == 4:
                    pending = [I(f"buffer_load_dword v{vPl[0]}, v{vA[0]}, {srd(sWS)}, 0 offen sc1", "poll0"),
                               I(f"buffer_load_dword v{vPl[1]}, v{vA[3]}, {srd(sWS)}, 0 offen sc1", "poll3")] + list(w2_dma(0)) + list(w2_dma(1))
                if i == 5:
                    pending = list(u_loads()) + list(st_loads()) + list(w2_dma(2)) + list(w2_dma(3))
                if i == 6: pending = []
            rem = 4 if ks == 3 else 3 - ks
            n = -(-len(pending) // rem) if rem else len(pending)
            take, pending = pending[:n], pending[n:]
            fill.append(take)
            P += merge(g1_mfma(i, ks), *fill)
    stamp(P)
    vM = va("m", 2); vCS = fx; hp = aa("hp", 16, 4)
    P.e(f"""
v_and_b32 v{t0}, 31, v0
v_lshlrev_b32 v{t0}, 2, v{t0}
s_lshl_b32 s{sT0}, s{sW}, 7
s_add_u32 s{sT0}, s{sT0}, {L_RS}
v_add_u32 v{t1}, s{sT0}, v{t0}
s_and_b32 s{sT1}, s{sW}, 1
s_lshl_b32 s{sT1}, s{sT1}, 1
s_lshr_b32 s{sT2}, s{sW}, 1
s_add_u32 s{sT1}, s{sT1}, s{sT2}
s_lshl_b32 s{sT1}, s{sT1}, 7
s_add_u32 s{sT1}, s{sT1}, {L_CS}
v_add_u32 v{t2}, s{sT1}, v{t0}
v_mul_f32 v{vM}, {-1.0/448!r}, v{sacc}
v_cvt_pk_bf16_f32 v{vM}, v{vM}, v{vM}
v_lshlrev_b32 v{vM}, 16, v{vM}""")
    P.e(f"ds_write_b32 v{t1}, v{vM}\nds_write_b32 v{t2}, v{sacc+4}", tag="sw")
    P += w2_dma(4)
    P.e(f"""
v_xor_b32 v{t1}, 128, v{t1}
v_lshlrev_b32 v{t2}, 4, v{vl5}
v_add_u32 v{t2}, s{sT1}, v{t2}
v_xor_b32 v{t3}, 128, v{t2}""")
    P.wlg("sw"); P.e("s_barrier")
    P.e(f"ds_read_b32 v{vM+1}, v{t1}", tag="sr")
    for b in range(2):
        for q in range(4): P.e(f"ds_read_b128 {vr(vCS+16*b+4*q,4)}, v{t2 if b == 0 else t3} offset:{q*32}", tag=f"cs{b}")
    P += w2_dma(5)
    P.e(f"""
s_lshr_b32 s{sT0}, s{sW}, 1
s_lshl_b32 s{sT1}, s{sR}, 1
s_add_u32 s{sT1}, s{sT1}, s{sT0}
s_mul_i32 s{sT1}, s{sT1}, 28
s_lshl_b32 s{sT2}, s{sJ}, 1
s_add_u32 s{sT1}, s{sT1}, s{sT2}
s_and_b32 s{sT2}, s{sW}, 1
s_add_u32 s{sT1}, s{sT1}, s{sT2}
s_lshl_b32 s{sT1}, s{sT1}, 13
s_add_u32 s{sT1}, s{sT1}, {WS_H}
s_lshl_b32 s{sT2}, s{sT2}, 12
s_lshl_b32 s{sT0}, s{sT0}, 11
s_add_u32 s{sT2}, s{sT2}, s{sT0}
v_add_u32 v{t0}, s{sT2}, v{vl16}
v_xor_b32 v{t1}, 0x1000, v{t0}
v_xor_b32 v{t2}, 0x800, v{t0}
v_xor_b32 v{t3}, 0x1800, v{t0}""")
    haddr = {(0, 0): t0, (0, 1): t1, (1, 0): t2, (1, 1): t3}
    P.wlg("sr", "cs0")
    for n_, (f, st) in enumerate(((0, 0), (0, 1), (1, 0), (1, 1))):
        if (f, st) == (1, 0): P.wlg("cs1")
        a = acc + (2*f+st)*16; o = hp + 8 * (n_ % 2)
        for r in range(0, 16, 2):
            P.e(f"v_pk_fma_f32 {vr(a+r,2)}, {vr(vCS+16*f+r,2)}, {vr(vM,2)}, {vr(a+r,2)} op_sel:[0,{st},0] op_sel_hi:[1,{st},1]")
        for r in range(8): P.e(f"v_cvt_pk_bf16_f32 v{o+r}, v{a+2*r}, v{a+2*r+1}")
        for r in range(8): P.e(f"v_pk_max_i16 v{o+r}, v{o+r}, 0")
        for e in range(2): P.e(f"buffer_store_dwordx4 {vr(o+4*e,4)}, v{haddr[(f,st)]}, {srd(sWS)}, s{sT1} offen offset:{e*1024} sc1", tag="hst")
    stamp(P)
    AR.release("acc", "fx", "sacc", "hp"); V.release("m", "sel")
    for h in range(2):
        for k in range(4): V.release(f"XA{h}{k}", f"XB{h}{k}")
        for k in range(2): V.release(f"WA{h}{k}")
    for q in range(4): V.release(f"DX{q}", f"DW{q}")

    vCA, vCB = va("CA"), va("CB"); us = va("us", 8, 4)
    cf = aa("cf", 128, 4)
    cacc = 224
    P.e(f"""
s_lshl_b32 s{sT0}, s{sW}, 10
s_add_u32 s{sT0}, s{sT0}, {CB}
v_add_u32 v{t0}, s{sT0}, v{vl16}""")
    P.wvm("u", "hd", "ca")
    P.e(f"""
ds_write_b128 v{t0}, {vr(vU,4)} offset:4576
ds_write_b128 v{t0}, {vr(vU+4,4)} offset:{9152+4576}
ds_write_b32 v{vHa}, v{vHd}""", tag="uw")
    P.e(f"""
v_and_b32 v{t1}, 3, v0
v_mul_u32_u24 v{t1}, 4160, v{t1}
v_add_u32 v{t2}, v{vr_}, v{vl4}
v_lshl_add_u32 v{t1}, v{t2}, 4, v{t1}
s_lshr_b32 s{sT0}, s{sW}, 1
s_and_b32 s{sT1}, s{sW}, 1
s_lshl_b32 s{sT1}, s{sT1}, 8
s_mul_i32 s{sT2}, s{sT0}, 16640
s_add_u32 s{sT2}, s{sT2}, s{sT1}
s_add_u32 s{sT2}, s{sT2}, {CA}
v_add_u32 v{vCA}, s{sT2}, v{t1}
v_and_b32 v{t1}, 1, v0
v_mul_u32_u24 v{t1}, 4576, v{t1}
v_bfe_u32 v{t2}, v0, 1, 3
v_lshlrev_b32 v{t2}, 2, v{t2}
v_sub_u32 v{t2}, v{vl4}, v{t2}
v_add_u32 v{t2}, 28, v{t2}
v_lshl_add_u32 v{t1}, v{t2}, 4, v{t1}
s_mul_i32 s{sT2}, s{sT0}, 9152
s_add_u32 s{sT2}, s{sT2}, s{sT1}
s_add_u32 s{sT2}, s{sT2}, {CB}
v_add_u32 v{vCB}, s{sT2}, v{t1}""")
    P.wlg("uw", "bz"); P.e("s_barrier")
    P.e(f"ds_read_b32 v{vUn}, v{t0} offset:{4576+16}\nds_read_b32 v{vUn+1}, v{t0} offset:{9152+4576+16}", tag="un")
    for c in range(2):
        for d in range(3): P.e(f"v_alignbyte_b32 v{us+4*c+d}, v{vU+4*c+d+1}, v{vU+4*c+d}, 2")
    P += w2_read(0)
    P.wlg("un")
    for c in range(2): P.e(f"v_alignbyte_b32 v{us+4*c+3}, v{vUn+c}, v{vU+4*c+3}, 2")
    P.e(f"ds_write_b128 v{t0}, {vr(us,4)}\nds_write_b128 v{t0}, {vr(us+4,4)} offset:9152", tag="uw2")
    P += w2_dma(6)
    P.wlg("uw2"); P.e("s_barrier")
    def conv_reads(s_):
        s = Stream(); b = cf + 64 * (s_ % 2)
        for i in range(8):
            s.e(f"ds_read_b128 {vr(b+4*i,4)}, v{vCA} offset:{i*512 + s_*64}", tag=f"cA{s_}_{i}")
            s.e(f"ds_read_b128 {vr(b+32+4*i,4)}, v{vCB} offset:{(7-i)*512 + s_*64}", tag=f"cB{s_}_{i}")
        return s
    def conv_mfma(s_):
        s = Stream(); b = cf + 64 * (s_ % 2)
        done = set()
        for n in range(8):
            s.wlg(f"cA{s_}_{n}", f"cB{s_}_{n}")
            prods = [(i, r) for i in range(n + 1) for r in range(n + 1) if i + r <= 7 and (i, r) not in done]
            prods.sort(key=lambda p: (min(p), p))
            for (i, r) in prods:
                done.add((i, r)); t = cacc + 4 * (i + r)
                first = (s_ == 0 and not any((a + c == i + r) and (a, c) != (i, r) for (a, c) in done))
                s.e(f"v_mfma_f32_16x16x32_bf16 {ar(t,4)}, {vr(b+4*i,4)}, {vr(b+32+4*r,4)}, {'0' if first else ar(t,4)}")
        return s
    P += conv_reads(0)
    side = Stream()
    for g in range(1, 14):
        side += w2_read(g)
        if g + 6 <= 13: side += w2_dma(g + 6)
    side = list(side)
    nside = opt.get("w2_in_conv", 8)
    cut = [k for k, x in enumerate(side) if not isinstance(x, list) and x.kind == "wvm"]
    side_in, side_out = side[:cut[nside]], side[cut[nside]:]
    q4 = -(-len(side_in) // 4)
    for s_ in range(4):
        fill = []
        if s_ < 3: fill.append((conv_reads(s_ + 1), 12, 36))
        part = side_in[s_ * q4:(s_ + 1) * q4]
        if s_ == opt.get("pub_h_step", 2): part = list(publish(1, "hst")) + part
        fill.append(part)
        P += merge(conv_mfma(s_), *fill)
    stamp(P)
    P.e(f"buffer_load_dword v{vPl[0]}, v{vA[1]}, {srd(sWS)}, 0 offen sc1", tag="poll1")
    P.e(f"""
v_and_b32 v{t0}, 15, v0
v_lshlrev_b32 v{t1}, 2, v{vl4}
v_xor_b32 v{t0}, v{t0}, v{t1}
v_lshlrev_b32 v{t0}, 4, v{t0}
v_lshl_add_u32 v{t0}, v{vl4}, 8, v{t0}
s_lshl_b32 s{sT0}, s{sW}, 13
s_add_u32 s{sT0}, s{sT0}, {CA}
v_add_u32 v{t0}, s{sT0}, v{t0}
s_barrier""")
    for t in range(8): P.e(f"ds_write_b128 v{t0}, {ar(cacc+4*t,4)} offset:{t*1024}", tag="cw")
    P.e(f"""
v_and_b32 v{t1}, 3, v0
v_lshlrev_b32 v{t2}, 2, v{vl4}
v_bfe_u32 v{t3}, v0, 2, 1
v_lshl_add_u32 v{t2}, v{t3}, 1, v{t2}
v_bfe_u32 v{t3}, v0, 3, 1
v_add_u32 v{t2}, v{t2}, v{t3}
v_lshlrev_b32 v{t3}, 2, v{t1}
v_xor_b32 v{t2}, v{t2}, v{t3}
v_lshlrev_b32 v{t2}, 4, v{t2}
v_lshl_add_u32 v{t2}, v{t1}, 8, v{t2}
s_lshl_b32 s{sT0}, s{sW}, 11
s_add_u32 s{sT0}, s{sT0}, {CA}
v_add_u32 v{t2}, s{sT0}, v{t2}""")
    P += side_out
    P.wlg("ALL"); P.e("s_barrier")
    yr = cf
    for tt in range(2):
        for w in range(4): P.e(f"ds_read_b128 {vr(yr+16*tt+4*w,4)}, v{t2} offset:{w*8192+tt*1024}", tag=f"yr{tt}")
    NH = 16
    hf = cf + 64
    P.e(f"""
s_mul_i32 s{sHo}, s{sRB}, 28
s_mul_i32 s{sT0}, s{sW}, 7
s_add_u32 s{sHo}, s{sHo}, s{sT0}
s_lshl_b32 s{sHo}, s{sHo}, 13
s_add_u32 s{sHo}, s{sHo}, {WS_H}
s_lshl_b32 s{sT1}, s{sCB}, 5
s_add_u32 s{sT1}, s{sT1}, s{sRB}
s_lshl_b32 s{sT1}, s{sT1}, 13
s_lshl_b32 s{sT0}, s{sW}, 11
s_add_u32 s{sT1}, s{sT1}, s{sT0}
s_add_u32 s{sT1}, s{sT1}, {WS_Y2}""")
    for tt in range(2):
        P.wlg(f"yr{tt}")
        b = yr + 16 * tt
        P.e(f"""
v_pk_add_f32 {vr(b,2)}, {vr(b,2)}, {vr(b+4,2)}
v_pk_add_f32 {vr(b+2,2)}, {vr(b+2,2)}, {vr(b+6,2)}
v_pk_add_f32 {vr(b+8,2)}, {vr(b+8,2)}, {vr(b+12,2)}
v_pk_add_f32 {vr(b+10,2)}, {vr(b+10,2)}, {vr(b+14,2)}""")
        for r in range(4): P.e(f"v_cvt_pk_bf16_f32 v{b+4+r}, v{b+r}, v{b+8+r}")
        P.e(f"buffer_store_dwordx4 {vr(b+4,4)}, v{vl16}, {srd(sWS)}, s{sT1} offen offset:{tt*1024} sc1", tag="yst")
    P.wvm("st")
    for c in range(1, 7): P.e(f"v_pk_add_f32 {vr(vSt,2)}, {vr(vSt,2)}, {vr(vSt+2*c,2)}")
    bfr = lambda r: f"v_cvt_pk_bf16_f32 v{r}, v{r}, v{r}\nv_lshlrev_b32 v{r}, 16, v{r}"
    P.e(f"""
v_mul_f32 v{vSt}, {1.0/448!r}, v{vSt}
v_mul_f32 v{vSt+1}, {1.0/448!r}, v{vSt+1}
v_fma_f32 v{vSt+1}, -v{vSt}, v{vSt}, v{vSt+1}
v_max_f32 v{vSt+1}, 0, v{vSt+1}
{bfr(vSt)}
{bfr(vSt+1)}
v_add_f32 v{vSt+1}, 0x3727c5ac, v{vSt+1}
{bfr(vSt+1)}
v_sqrt_f32 v{vSt+1}, v{vSt+1}
{bfr(vSt+1)}
v_rcp_f32 v{vSt+1}, v{vSt+1}
s_lshl_b32 s{sT0}, s{sW}, 9
s_add_u32 s{sT0}, s{sT0}, {L_STT}
v_lshlrev_b32 v{t0}, 3, v0
v_add_u32 v{t0}, s{sT0}, v{t0}""")
    P.e(f"ds_write_b64 v{t0}, {vr(vSt,2)}", tag="stw")
    poll_check(P, vPl[0], vA[1], vT[1], "poll1")
    stamp(P)
    gacc = cf
    order = [(st, c, kb) for st in range(2) for c in range(7) for kb in range(4)]
    def hload(n):
        st, c, kb = order[n]
        s = Stream()
        txt = f"buffer_load_dwordx4 {vr(hf+4*(n%NH),4)}, v{vl16}, {srd(sWS)}, s{sHo} offen offset:{kb*1024} sc1"
        if kb == 3:
            adv = 8192 if c < 6 else (4096 - 6*8192)
            s.glue(txt + (f"\ns_add_u32 s{sHo}, s{sHo}, {adv & 0xffffffff}" if n < 55 else ""), tag=f"h{n}")
        else: s.e(txt, tag=f"h{n}")
        return s
    NPRE = 12
    for n in range(NPRE): P += hload(n)
    V.release("u", "us", "un", "CA", "CB", "hd", "ha", "D20", "D21", "D22", "D23")
    vGW = [va(f"GW{q}") for q in range(4)]; vGR = va("GR"); vAW = va("AW"); vAR = va("AR"); vOut = va("out"); vY = va("y", 8, 4); vMR = vSt; vRr = va("rr", 2)
    P.e(f"""
v_and_b32 v{t0}, 31, v0
v_lshlrev_b32 v{t0}, 8, v{t0}
s_lshl_b32 s{sT0}, s{sW}, 14
v_add_u32 v{t0}, s{sT0}, v{t0}
v_xor_b32 v{t1}, v{vl7}, v{vl5}""")
    for q in range(4): P.e(f"v_xor_b32 v{t2}, {2*q}, v{t1}\nv_lshl_add_u32 v{vGW[q]}, v{t2}, 4, v{t0}")
    P.e(f"""
v_lshlrev_b32 v{t0}, 1, v{vl7}
v_xor_b32 v{t0}, v{t0}, v{vl3}
v_lshlrev_b32 v{t1}, 8, v{vPair}
v_lshl_add_u32 v{vGR}, v{t0}, 4, v{t1}
s_lshl_b32 s{sT0}, s{sW}, 4
v_xor_b32 v{vAR}, s{sT0}, v{vGR}
v_add_u32 v{vAR}, {L_AP}, v{vAR}
v_lshrrev_b32 v{t0}, 1, v{vPair}
v_xor_b32 v{t0}, v{t0}, v{vl7}
v_lshlrev_b32 v{t0}, 4, v{t0}
v_and_b32 v{t1}, 1, v{vPair}
v_lshl_add_u32 v{t0}, v{t1}, 3, v{t0}
v_lshl_add_u32 v{t0}, v{vl7}, 11, v{t0}
v_add_u32 v{vAW}, {L_AP}, v{t0}
v_mul_u32_u24 v{t0}, 896, v{vPair}
v_lshl_add_u32 v{vOut}, v{vl7}, 4, v{t0}
s_lshl_b32 s{sT0}, s{sW}, 9
s_add_u32 s{sT0}, s{sT0}, {L_STT}
v_lshlrev_b32 v{t0}, 6, v{vl7}
v_add_u32 v{t0}, s{sT0}, v{t0}
v_lshlrev_b32 v{t1}, 3, v{vPair}
v_add_u32 v{t1}, s{sT0}, v{t1}""")
    P.wlg("stw")
    for q in range(4): P.e(f"ds_read_b128 {vr(vMR+4*q,4)}, v{t0} offset:{16*q}", tag="mr")
    P.e(f"ds_read_b32 v{vRr}, v{t1} offset:4\nds_read_b32 v{vRr+1}, v{t1} offset:{256+4}", tag="mr")
    def g2_part(lo, hi):
        s = Stream()
        for n in range(lo, hi):
            st, c, kb = order[n]
            s.wvm(f"h{n}")
            for dt in range(2):
                a = gacc + (2*dt+st)*16; wa = ((4*c + kb) * 2 + dt) * 4
                s.e(f"v_mfma_f32_32x32x16_bf16 {vr(a,16)}, {ar(wa,4)}, {vr(hf+4*(n%NH),4)}, {'0' if (c, kb) == (0, 0) else vr(a,16)}")
            if n + NPRE < 56: s += hload(n + NPRE)
        return s
    def gwrite(st):
        s = Stream()
        for dt in range(2):
            for q in range(4):
                s.e(f"ds_write_b128 v{vGW[q]}, {vr(gacc+(2*dt+st)*16+4*q,4)} offset:{st*8192+dt*128}", tag=f"gw{st}")
        return s
    P += merge(g2_part(0, 28), (publish(2, "yst"), 16, 20))
    ypoll = Stream().e(f"buffer_load_dword v{vPl[1]}, v{vA[2]}, {srd(sWS)}, 0 offen sc1", tag="poll2")
    yl = Stream()
    poll_check(yl, vPl[1], vA[2], vT[2], "poll2")
    yl.e(f"""
s_lshl_b32 s{sT1}, s{sCB}, 18
s_lshl_b32 s{sT0}, s{sRB}, 8
s_add_u32 s{sT1}, s{sT1}, s{sT0}
s_add_u32 s{sT1}, s{sT1}, {WS_Y2}
v_lshlrev_b32 v{t0}, 13, v{vPair}
v_lshl_add_u32 v{t0}, v{vl7}, 4, v{t0}""")
    yl.e(f"""
buffer_load_dwordx4 {vr(vY,4)}, v{t0}, {srd(sWS)}, s{sT1} offen sc1
buffer_load_dwordx4 {vr(vY+4,4)}, v{t0}, {srd(sWS)}, s{sT1} offen offset:128 sc1""", tag="y")
    P += merge(g2_part(28, 56), (gwrite(0), 4, 28), (ypoll, 2, 3), (yl, 32, 44))
    stamp(P)
    P += gwrite(1)
    ap = hf
    P.wvm("y"); P.wlg("mr")
    for i in range(8):
        yreg = vY + (i % 2) * 4 + i // 2
        x2 = ap + 4 * i; y2 = x2 + 2; m2 = vMR + 2 * i
        P.e(f"""
v_lshlrev_b32 v{x2}, 16, v{vXP+i}
v_and_b32 v{x2+1}, 0xffff0000, v{vXP+i}
v_lshlrev_b32 v{y2}, 16, v{yreg}
v_and_b32 v{y2+1}, 0xffff0000, v{yreg}
v_pk_add_f32 {vr(y2,2)}, {vr(y2,2)}, {vr(vKD+2*i,2)}
v_pk_add_f32 {vr(vKD+2*i,2)}, {vr(x2,2)}, {vr(m2,2)} op_sel_hi:[1,0] neg_lo:[0,1] neg_hi:[0,1]
v_pk_mul_f32 {vr(vKD+2*i,2)}, {vr(vKD+2*i,2)}, {vr(m2,2)} op_sel:[0,1] op_sel_hi:[1,1]
v_xor_b32 v{t0+(i%2)}, {i*16}, v{vAW}
v_pk_fma_f32 {vr(x2,2)}, {vr(vKD+2*i,2)}, {vr(y2,2)}, {vr(x2,2)}""")
        P.e(f"ds_write_b64 v{t0+(i%2)}, {vr(x2,2)} offset:{i*256}", tag="aw")
    P.e(f"""
v_xor_b32 v{t2}, 16, v{vGR}
v_xor_b32 v{t3}, 16, v{vAR}
v_xor_b32 v{t0}, 64, v{vAR}
v_xor_b32 v{t1}, 80, v{vAR}
s_mul_i32 s{sT0}, s{sRB}, {64*896}
s_lshl_b32 s{sT1}, s{sCB}, 7
s_add_u32 s{sT0}, s{sT0}, s{sT1}
s_add_u32 s{sT1}, s{sT0}, {32*896}""")
    P.wlg("ALL"); P.e("s_barrier")
    rd = cf
    for st in range(2):
        b = rd + 40 * st
        for w in range(4):
            P.e(f"ds_read_b128 {vr(b+8*w,4)}, v{vGR} offset:{w*16384+st*8192}\nds_read_b128 {vr(b+8*w+4,4)}, v{t2} offset:{w*16384+st*8192}", tag=f"rd{st}")
        a0, a1 = (vAR, t3) if st == 0 else (t0, t1)
        P.e(f"ds_read_b128 {vr(b+32,4)}, v{a0} offset:{st*8192}\nds_read_b128 {vr(b+36,4)}, v{a1} offset:{st*8192}", tag=f"rd{st}")
    for st in range(2):
        b = rd + 40 * st
        P.wlg(f"rd{st}")
        for r in range(0, 8, 2):
            P.e(f"""
v_pk_add_f32 {vr(b+r,2)}, {vr(b+r,2)}, {vr(b+8+r,2)}
v_pk_add_f32 {vr(b+16+r,2)}, {vr(b+16+r,2)}, {vr(b+24+r,2)}""")
        for r in range(0, 8, 2): P.e(f"v_pk_add_f32 {vr(b+r,2)}, {vr(b+r,2)}, {vr(b+16+r,2)}")
        for r in range(0, 8, 2): P.e(f"v_pk_fma_f32 {vr(b+r,2)}, {vr(b+r,2)}, {vr(vRr,2)}, {vr(b+32+r,2)} op_sel:[0,{st},0] op_sel_hi:[1,{st},1]")
        for r in range(4): P.e(f"v_cvt_pk_bf16_f32 v{b+8+r}, v{b+2*r}, v{b+2*r+1}")
        P.e(f"buffer_store_dwordx4 {vr(b+8,4)}, v{vOut}, {srd(sO)}, s{sT0 if st == 0 else sT1} offen", tag="ost")
    P.e(f"""
s_cmp_lg_u32 s{sW}, 0
s_cbranch_scc1 NOEP
s_lshl_b32 s{sT2}, s{sL}, 2
s_mov_b64 exec, 1""")
    P.append(I(f"buffer_store_dword v{vTagV}, v{vZero}, {srd(sWS)}, s{sT2} offen sc1", kind="cond"))
    P.e("s_mov_b64 exec, -1\nNOEP:")
    if diag:
        P.wvm("ALL")
        stamp(P)
        P.e(f"s_waitcnt lgkmcnt(0)\ns_lshl_b32 s{sT2}, s{sL}, 2\ns_add_u32 s{sT2}, s{sT2}, s{sW}\ns_lshl_b32 s{sT2}, s{sT2}, 6\ns_add_u32 s{sT2}, s{sT2}, {WS_STAMP}\ns_mov_b64 exec, 1")
        for i in range(nstamp[0]):
            P.e(f"v_mov_b32 v{t0}, s{80+2*i}\nbuffer_store_dword v{t0}, v{vZero}, {srd(sWS)}, s{sT2} offen offset:{4*i}")
    P.e("END:\ns_endpgm")
    Hs = Stream()
    Hs.e(f"""
HELPER:
s_getpc_b64 s[30:31]
PCREF:
s_add_u32 s30, s30, {KN}-PCREF
s_addc_u32 s31, s31, -1
v_lshlrev_b32 v1, 7, v0
v_min_u32 v1, CODE_END-{KN}-4, v1
global_load_dword v2, v1, s[30:31]
s_waitcnt vmcnt(0)
s_endpgm""")
    for x in Hs: x.kind = "cond"
    ins = resolve_waits(flatten(P))
    ins = pad_hazards(ins) + pad_hazards(list(tail)) + pad_hazards(list(Hs))
    body = "\n".join(("" if x.t.endswith(":") else "  ") + x.t for x in ins)
    hdr = open("parallel_sum__ssm_conv_h3__dense_activation_relu__prompt.s.ref").read().split("; Override launch")[0]
    return f"""{hdr}; generated by gen/gen.py (own generator); fused LN + short conv + long conv (Toeplitz MFMA) + MLP
; @launch grid=(256,1,1) block=(256,1,1) lds={LDS_SIZE}
.amdgcn_target "amdgcn-amd-amdhsa--gfx950"
.text
.globl {KN}
.p2align 8
.type {KN},@function
{KN}:
{body}
CODE_END:
.section .rodata,"a"
.p2align 6
.amdhsa_kernel {KN}
  .amdhsa_next_free_vgpr 512
  .amdhsa_next_free_sgpr 102
  .amdhsa_accum_offset 256
  .amdhsa_group_segment_fixed_size 0
  .amdhsa_kernarg_size 96
  .amdhsa_user_sgpr_count 2
  .amdhsa_user_sgpr_kernarg_segment_ptr 1
  .amdhsa_system_sgpr_workgroup_id_x 1
  .amdhsa_float_denorm_mode_32 3
.end_amdhsa_kernel
"""

if __name__ == "__main__":
    opt = {}
    out = "parallel_sum__ssm_conv_h3__dense_activation_relu__prompt.s"
    for a in sys.argv[1:]:
        k, v = a.split("=")
        if k == "out": out = v
        else: opt[k] = int(v) if v.lstrip("-").isdigit() else v
    open(out, "w").write(gen(opt))
    print("wrote", out)
```

```python
import re

class I:
    __slots__ = ("t", "tag", "kind", "m0")
    def __init__(self, t, tag=None, kind=None, m0=None):
        self.t = t; self.tag = tag; self.kind = kind; self.m0 = m0
    def __repr__(self): return self.t

def _regs(tok):
    tok = tok.strip()
    neg = tok.lstrip("-|").rstrip("|")
    m = re.fullmatch(r"abs\((.*)\)", neg)
    if m: neg = m.group(1)
    m = re.fullmatch(r"([vas])\[(\d+):(\d+)\]", neg)
    if m: return [f"{m.group(1)}{i}" for i in range(int(m.group(2)), int(m.group(3)) + 1)]
    m = re.fullmatch(r"([vas])(\d+)", neg)
    if m: return [neg]
    if neg == "vcc": return ["vcc"]
    if neg == "exec": return ["exec"]
    if neg == "m0": return ["m0"]
    return []

def parse(t):
    t = t.split(";")[0].strip()
    if not t or t.endswith(":") or t.startswith("."): return ("", [], [])
    p = t.split(None, 1)
    op = p[0]
    rest = p[1] if len(p) > 1 else ""
    ops = [o.strip() for o in re.split(r",(?![^\[]*\])", rest)]
    toks = []
    for o in ops:
        toks.append(o.split()[0] if o.split() else "")
    R = [_regs(x) for x in toks]
    dst, src = [], []
    if op.startswith(("buffer_store", "global_store", "ds_write", "buffer_atomic")):
        for r in R: src += r
    elif op.startswith(("buffer_load", "global_load")):
        if " lds" in t or op.startswith("global_load_lds"):
            for r in R: src += r
            src.append("m0")
        else:
            dst += R[0]
            for r in R[1:]: src += r
    elif op.startswith(("s_cmp", "s_cbranch", "s_branch", "s_waitcnt", "s_barrier", "s_nop", "s_sleep", "s_endpgm", "s_setprio")):
        for r in R: src += r
    elif op.startswith("v_cmp"):
        dst += R[0]
        for r in R[1:]: src += r
    elif op.startswith(("v_permlane32_swap", "v_permlane16_swap", "v_swap")):
        dst += R[0] + R[1]; src += R[0] + R[1]
    elif op.startswith(("v_add_co", "v_addc_co", "v_sub_co")):
        dst += R[0] + R[1]
        for r in R[2:]: src += r
    else:
        if R: dst += R[0]
        for r in R[1:]: src += r
        if op.startswith(("v_fmac", "v_dot2c", "v_writelane")) or "_dpp" in op: src += R[0]
        if op.startswith("v_cndmask") and len(R) == 3: src.append("vcc")
    return (op, dst, src)

def is_vmem(op): return op.startswith(("buffer_", "global_"))
def is_ds(op): return op.startswith("ds_")
def is_smem(op): return op.startswith(("s_load", "s_memtime", "s_memrealtime", "s_buffer_load", "s_atomic"))
def is_mfma(op): return op.startswith("v_mfma")
def is_valu(op): return op.startswith("v_") and not is_mfma(op)
def is_trans(op): return re.match(r"v_(exp|log|rcp|rsq|sqrt|sin|cos)_", op) is not None
def mfma_passes(op):
    if "32x32x16" in op: return 8
    if "16x16x32" in op: return 4
    raise ValueError(op)

class Stream(list):
    def e(self, t, tag=None):
        for line in t.strip("\n").split("\n"):
            line = line.strip()
            if line: self.append(I(line, tag))
        return self
    def dma(self, t, m0, tag=None, kind=None):
        self.append(I(t, tag, kind, m0)); return self
    def wvm(self, *tags): self.append(I("WVM " + " ".join(tags), kind="wvm")); return self
    def wlg(self, *tags): self.append(I("WLG " + " ".join(tags), kind="wlg")); return self
    def glue(self, t, tag=None):
        g = Stream().e(t, tag)
        self.append(list(g)); return self

def flatten(s):
    out = []
    for x in s:
        if isinstance(x, list): out += flatten(x)
        else: out.append(x)
    return out

def merge(main, *fill, lead=0, every=None):
    main = list(main)
    pos = [i for i, x in enumerate(main) if not isinstance(x, list) and x.t.startswith("v_mfma")]
    n = len(pos)
    slots = [[] for _ in range(n)]
    for f in fill:
        lo, hi = 0, n
        if isinstance(f, tuple): f, lo, hi = f
        f = list(f)
        m = len(f)
        for k, it in enumerate(f):
            slots[lo + (k * (hi - lo)) // max(m, 1)].append(it)
    out = Stream()
    si = 0
    for i, x in enumerate(main):
        out.append(x)
        if si < n and i == pos[si]:
            out += slots[si]; si += 1
    return out

def resolve_waits(ins):
    out = []
    vm = []
    lg = []
    sm = set(); sm_done = set()
    vm_done = 0; lg_done = 0
    for x in ins:
        if x.kind == "wvm":
            tags = x.t.split()[1:]
            if tags == ["ALL"]: idx = len(vm) - 1
            else:
                c = [i for i, t in enumerate(vm) if t in tags]
                for t in tags: assert t in vm, f"wvm: tag {t} not issued"
                idx = max(c)
            if idx < vm_done and tags != ["ALL"]: continue
            n = len(vm) - 1 - idx
            out.append(I(f"s_waitcnt vmcnt({min(n, 63)})"))
            vm_done = len(vm) - min(n, 63)
            continue
        if x.kind == "wlg":
            tags = x.t.split()[1:]
            if tags == ["ALL"] or any(t in sm for t in tags):
                out.append(I("s_waitcnt lgkmcnt(0)")); lg_done = len(lg); sm.clear(); continue
            tags = [t for t in tags if t not in sm_done]
            if not tags: continue
            if tags == ["LDS"]: idx = len(lg) - 1
            else:
                for t in tags: assert t in lg, f"wlg: tag {t} not issued"
                idx = max(i for i, t in enumerate(lg) if t in tags)
            if idx < lg_done: continue
            n = len(lg) - 1 - idx
            out.append(I(f"s_waitcnt lgkmcnt({min(n, 15)})"))
            lg_done = len(lg) - min(n, 15)
            if n == 0: sm.clear()
            continue
        op = x.t.split()[0]
        if x.kind != "cond":
            if is_vmem(op): vm.append(x.tag)
            elif is_ds(op): lg.append(x.tag)
            elif is_smem(op): sm.add(x.tag); sm_done.add(x.tag)
        out.append(x)
    fused = []
    for x in out:
        if fused and x.t.startswith("s_waitcnt") and fused[-1].t.startswith("s_waitcnt"):
            a = dict(re.findall(r"(\w+)\((\d+)\)", fused[-1].t)); b = dict(re.findall(r"(\w+)\((\d+)\)", x.t))
            for k, v in b.items(): a[k] = str(min(int(v), int(a.get(k, 99))))
            fused[-1] = I("s_waitcnt " + " ".join(f"{k}({v})" for k, v in sorted(a.items(), reverse=True)))
        else: fused.append(x)
    return fused

def pad_hazards(ins, verbose=False):
    out = []
    hist = []
    now = 0; pipe = 0; c1 = 0
    for x in ins:
        op, dst, src = parse(x.t)
        if not op:
            out.append(x); continue
        S, D = set(src), set(dst)
        need = 0
        for (pop, pd, ps, tm, pt, tc) in reversed(hist):
            if c1 - tc > 30: break
            req = 0
            pd_ = set(pd)
            if is_mfma(pop):
                P = mfma_passes(pop)
                pc = set(_regs(pt.split(",")[-1].split()[0]))
                if is_mfma(op):
                    toks = [o.strip() for o in re.split(r",(?![^\[]*\])", x.t.split(None, 1)[1])]
                    ab = set(_regs(toks[1]) + _regs(toks[2])); c = set(_regs(toks[3].split()[0]))
                    if pd_ & ab: req = max(req, {4: 8, 8: 12}[P])
                    if pd_ & c and not (pd_ == c and mfma_passes(op) == P): req = max(req, {4: 6, 8: 10}[P])
                    if pd_ & D and not (pd_ & c): req = max(req, {4: 8, 8: 12}[P])
                else:
                    if pd_ & (S | D): req = max(req, {4: 8, 8: 12}[P])
                    if is_valu(op) and pc & D: req = max(req, {4: 3, 8: 7}[P])
            elif is_valu(pop):
                vd = {r for r in pd_ if r[0] in "va" and r not in ("vcc",)}
                sd = {r for r in pd_ if r[0] == "s" or r == "vcc"}
                if is_mfma(op) and vd & S: req = max(req, 2)
                if is_mfma(op) and "exec" in pd_: req = max(req, 4)
                if is_valu(op):
                    if sd & S: req = max(req, 4 if op.startswith(("v_readlane", "v_writelane")) else 2)
                    if "_dpp" in op and vd & S: req = max(req, 2)
                    if op.startswith(("v_readlane", "v_readfirstlane")) and vd & S: req = max(req, 1)
                    if op.startswith("v_permlane") and vd & S: req = max(req, 2)
                    if is_trans(pop) and vd & S: req = max(req, 1)
                    if pop.startswith("v_dot") and vd & (S | D) and not (op == pop and not (vd & set(src[:-1])) ): req = max(req, 3)
                    if ("sdwa" in pop or "op_sel" in pt) and vd & (S | D): req = max(req, 1)
                if pop.startswith("v_dot") and not is_valu(op) and vd & S: req = max(req, 3)
                if is_vmem(op) and sd & S: req = max(req, 5)
                if op.startswith("s_") and sd & S and not op.startswith("s_cbranch"): req = max(req, 1)
            elif pop.startswith("s_"):
                if "m0" in pd_ and "m0" in S and is_vmem(op): req = max(req, 1)
            if pop.startswith(("buffer_store_dwordx4", "buffer_store_dwordx3", "global_store_dwordx4")):
                data = set(_regs(pt.split(None, 1)[1].split(",")[0])) if pop.startswith("buffer") else set()
                if data & D: req = max(req, 2)
            if req: need = max(need, (tm + 1 + req - now) if is_mfma(pop) else (tc + 1 + req - c1))
        while need > 0:
            k = min(need, 16)
            out.append(I(f"s_nop {k-1}")); now += k; c1 += k; need -= k
        if is_mfma(op):
            now = max(now, pipe); pipe = now + mfma_passes(op)
        out.append(x)
        hist.append((op, dst, src, now, x.t, c1))
        m = re.match(r"s_nop (\d+)", x.t)
        now += int(m.group(1)) + 1 if m else 1
        c1 += int(m.group(1)) + 1 if m else 1
        hist = hist[-40:]
    return out

class RegAlloc:
    def __init__(self, kind, lo, hi):
        self.kind = kind; self.free = set(range(lo, hi)); self.named = {}
    def alloc(self, name, n=1, align=1):
        if n > 1 and align == 1: align = 2
        for b in sorted(self.free, reverse=(n >= 8)):
            if b % align == 0 and all((b + i) in self.free for i in range(n)):
                for i in range(n): self.free.discard(b + i)
                self.named[name] = (b, n)
                return b
        raise RuntimeError(f"out of {self.kind} regs for {name} ({n})")
    def release(self, *names):
        for name in names:
            b, n = self.named.pop(name)
            for i in range(n): self.free.add(b + i)


def place_m0(ins):
    out = []; cur = None
    for x in ins:
        if x.t.endswith(":"): cur = None
        if x.m0 is not None and x.m0 != cur:
            r, c = x.m0
            t = f"s_mov_b32 m0, {c}" if r is None else f"s_add_u32 m0, s{r}, {c}"
            if r is not None and c == 0: t = f"s_mov_b32 m0, s{r}"
            p = out[-1] if out else None
            ok = p is not None and p.m0 is None and p.kind is None and p.t.split()[0].startswith(("v_mfma", "ds_read"))
            if ok: out.insert(len(out) - 1, I(t))
            else: out.append(I(t))
            cur = x.m0
        out.append(x)
    return out

def cost(x):
    if isinstance(x, list):
        c = [cost(y) for y in x]; return (sum(a for a, _ in c), sum(b for _, b in c))
    if x.kind in ("wvm", "wlg"): return (4, 0)
    op = x.t.split()[0]
    if x.t.endswith(":"): return (0, 0)
    if is_vmem(op): return (12, 64 if "x4" in op else 32)
    if op.startswith("s_"): return (2, 0)
    return (4, 0)

class Sched:
    def __init__(self): self.chains = []
    def add(self, items, earliest=0, name=None, after=None):
        self.chains.append({"q": list(items), "e": earliest, "name": name, "after": after})
    def extend(self, name, items):
        c = [c for c in self.chains if c["name"] == name]
        if c: c[0]["q"] += list(items)
        else: self.add(items, 0, name)
    def done(self, name): return all(not c["q"] for c in self.chains if c["name"] == name)
    def take(self, step, issue, stream):
        out = []
        for c in self.chains:
            if c["e"] > step: continue
            if c["after"] and not self.done(c["after"]): continue
            while c["q"]:
                a, b = cost(c["q"][0])
                if out and (a > issue + 6 or b > stream + 16): break
                out.append(c["q"].pop(0)); issue -= a; stream -= b
        return out
    def flush(self, name=None):
        out = []
        for c in self.chains:
            if name is None or c["name"] == name:
                out += c["q"]; c["q"] = []
        return out
```

```python
import sys
from asmlib import *

KN = "parallel_sum__ssm_conv_h3__dense_activation_relu__prompt_kernel"
XB = 2048 * 448 * 2
WB = 448 * 1792 * 2
WS_E = 0
MB0, MB3, MB1, MB2 = 0x1000, 0x5000, 0x9000, 0xD000
WS_ST = 0x58000
WS_STAMP = 0x98000
WS_KVT = 0x100000
WS_Y2 = 0x2C0000
WS_H = 0x480000
WS_END = WS_H + 0x700000
SLOT = 32768
CA = 98304
CB = CA + 33280
MISC = 150016
L_EX = MISC
L_EXC = MISC + 1024
L_EXZ = MISC + 2048
L_STT = MISC + 2304
LDS_SIZE = MISC + 2304 + 512
P0K = CA; P0V = P0K + 9 * 1040; P0X = P0V + 8 * 1040
L_AP = 131840
assert L_AP >= CB and L_AP + 16384 <= MISC and L_AP % 256 == 0
LCG_A = 0x9E3779B1; LCG_C = 0x7F4A7C15

def gen(opt):
    diag = opt.get("diag", 0)
    p0pos = opt.get("p0pos", -1)
    V = RegAlloc("v", 1, 112); va = V.alloc
    AR = RegAlloc("v", 112, 256); aa = AR.alloc
    sX, sK, sV, sW1, sW2, sH, sWS, sO = 28, 32, 36, 40, 44, 48, 52, 56
    S = RegAlloc("s", 60, 92)
    sa = lambda n: S.alloc(n)
    sW, sRB, sCB, sR, sHALF, sJ = [sa(n) for n in "W RB CB R HALF J".split()]
    sXo, sWo, sSt, sM0a, sM0b, sW2o, sP0o, sP0m = [sa(n) for n in "Xo Wo St M0a M0b W2o P0o P0m".split()]
    sT0, sT1, sT2 = sa("T0"), sa("T1"), sa("T2")
    sPL = 92; sTAG = 100
    srd = lambda n: f"s[{n}:{n+3}]"
    vr = lambda b, n: f"v[{b}:{b+n-1}]" if n > 1 else f"v{b}"
    ar = lambda b, n: f"a[{b}:{b+n-1}]" if n > 1 else f"a{b}"
    stamp_regs = [6, 8, 12, 16, 18, 20, 22, 24]
    used_st = []
    sel = opt.get("stamps", "g1go,g1done,hst,cv_0,convdone,g2go,g2done,end").split(",")
    smn = 's_memtime' if diag == 2 else 's_memrealtime'
    def stamp(s, name):
        if diag and name in sel:
            r = stamp_regs[len(used_st)]; used_st.append(r)
            s.e(f"{smn} s[{r}:{r+1}]", tag="stamp")
    tail = Stream()
    npoll = [0]
    def poll_issue(s, sOff, tag):
        s.e(f"s_load_dwordx8 s[{sPL}:{sPL+7}], s[26:27], s{sOff} glc", tag=tag)
    def poll_check(s, sOff, tag, n):
        k = npoll[0]; npoll[0] += 1
        chk = (f"s_mov_b32 s{sPL+7}, s{sTAG}\n" if n == 7 else "") + "\n".join(
            f"s_xor_b64 s[{sPL+2*i}:{sPL+2*i+1}], s[{sPL+2*i}:{sPL+2*i+1}], s[{sTAG}:{sTAG+1}]" for i in range(4)) + f"""
s_or_b64 s[{sPL}:{sPL+1}], s[{sPL}:{sPL+1}], s[{sPL+2}:{sPL+3}]
s_or_b64 s[{sPL+4}:{sPL+5}], s[{sPL+4}:{sPL+5}], s[{sPL+6}:{sPL+7}]
s_or_b64 s[{sPL}:{sPL+1}], s[{sPL}:{sPL+1}], s[{sPL+4}:{sPL+5}]"""
        s.wlg(tag)
        s.glue(chk + f"\ns_cbranch_scc1 RETRY{k}\nOK{k}:")
        for t in f"""RETRY{k}:
s_mov_b32 s3, 100000
RL{k}:
s_load_dwordx8 s[{sPL}:{sPL+7}], s[26:27], s{sOff} glc
s_sub_u32 s3, s3, 1
s_cmp_eq_u32 s3, 0
s_waitcnt lgkmcnt(0)
s_cbranch_scc1 OK{k}
{chk}
s_cbranch_scc1 RL{k}
s_branch OK{k}""".split("\n"):
            tail.append(I(t, kind="cond"))
    def signal(s, vmtag, *offs):
        s.wvm(vmtag)
        for o in offs: s.e(f"s_atomic_swap s{sTAG}, s[26:27], s{o}", tag="sig")

    P = Stream()
    t0, t1, t2, t3 = va("t0"), va("t1"), va("t2"), va("t3")
    if diag: P.e(f"{smn} s[92:93]", tag="stamp")
    P.e(f"""
s_load_dwordx16 s[4:19], s[0:1], 0
s_load_dwordx8 s[20:27], s[0:1], 64""", tag="karg")
    P.e(f"""
v_lshrrev_b32 v{t0}, 6, v0
s_cmp_ge_u32 s2, 32
s_cbranch_scc1 MAIN""")
    Hs = Stream()
    Hs.e(f"""
s_getpc_b64 s[30:31]
PCREF:
v_lshlrev_b32 v1, 7, v0
v_min_u32 v1, CODE_END-PCREF-4, v1
global_load_dword v2, v1, s[30:31]
s_branch HELPER""")
    for x in Hs: x.kind = "cond"
    P += Hs
    vl3, vl7, vl4, vl5, vr_, vlo, vl16, vPair = [va(n) for n in "l3 l7 l4 l5 r lo l16 pair".split()]
    vDX = [va(f"DX{q}") for q in range(4)]; vDW = [va(f"DW{q}") for q in range(4)]
    P.e(f"""
MAIN:
s_cmp_ge_u32 s2, 256
s_cbranch_scc1 END
v_readfirstlane_b32 s{sW}, v{t0}
v_and_b32 v0, 63, v0
s_sub_u32 s3, s2, 32
s_and_b32 s{sT0}, s3, 7
s_lshr_b32 s{sT1}, s3, 3
s_mul_i32 s{sT2}, s{sT1}, 37
s_lshr_b32 s{sT2}, s{sT2}, 8
s_mul_i32 s3, s{sT2}, 7
s_sub_u32 s{sCB}, s{sT1}, s3""")
    if opt.get("map", "B") == "B":
        P.e(f"s_lshr_b32 s{sR}, s{sT0}, 1\ns_lshl_b32 s{sR}, s{sR}, 2\ns_add_u32 s{sR}, s{sR}, s{sT2}\ns_and_b32 s{sHALF}, s{sT0}, 1")
    else:
        P.e(f"s_lshl_b32 s{sR}, s{sT0}, 1\ns_lshr_b32 s3, s{sT2}, 1\ns_add_u32 s{sR}, s{sR}, s3\ns_and_b32 s{sHALF}, s{sT2}, 1")
    P.e(f"""
s_lshl_b32 s{sRB}, s{sR}, 1
s_add_u32 s{sRB}, s{sRB}, s{sHALF}
s_mul_i32 s{sJ}, s{sHALF}, 7
s_add_u32 s{sJ}, s{sJ}, s{sCB}
v_lshrrev_b32 v{vl3}, 3, v0
v_and_b32 v{vl7}, 7, v0
v_lshrrev_b32 v{vl4}, 4, v0
v_mul_u32_u24 v{t3}, 896, v{vl3}
v_xor_b32 v{t1}, v{vl7}, v{vl4}
v_lshl_add_u32 v{vDX[0]}, v{t1}, 4, v{t3}
v_xor_b32 v{t1}, 4, v{t1}
v_lshl_add_u32 v{vDX[1]}, v{t1}, 4, v{t3}
v_add_u32 v{vDX[2]}, {2*6144}, v{vDX[0]}
v_add_u32 v{vDX[3]}, {3*6144}, v{vDX[1]}
v_add_u32 v{vDX[1]}, {6144}, v{vDX[1]}
v_mul_u32_u24 v{t0}, 3584, v{vl4}
v_and_b32 v{t1}, 15, v0
v_lshlrev_b32 v{t2}, 2, v{vl4}
v_xor_b32 v{t1}, v{t1}, v{t2}
v_lshl_add_u32 v{vDW[0]}, v{t1}, 4, v{t0}
v_add_u32 v{vDW[1]}, {4*3584-1024}, v{vDW[0]}
v_add_u32 v{vDW[2]}, {2*(4*3584-1024)}, v{vDW[0]}
v_add_u32 v{vDW[3]}, {3*(4*3584-1024)}, v{vDW[0]}
s_lshl_b32 s{sXo}, s{sR}, 2
s_add_u32 s{sXo}, s{sXo}, s{sW}
s_mul_i32 s{sXo}, s{sXo}, {32*896}
s_mul_i32 s{sWo}, s{sW}, {16*3584}
s_lshl_b32 s{sT1}, s{sJ}, 8
s_add_u32 s{sWo}, s{sWo}, s{sT1}
s_lshl_b32 s{sM0a}, s{sW}, 12
s_lshl_b32 s{sM0b}, s{sW}, 13""")
    rot = opt.get("rot", 1)
    if rot:
        if rot == 1: P.e(f"s_add_u32 s{sSt}, s{sR}, s{sCB}")
        elif rot == 2: P.e(f"s_mov_b32 s{sSt}, s{sT0}")
        elif rot == 3: P.e(f"s_mov_b32 s{sSt}, s{sCB}")
        P.e(f"""
s_mul_i32 s{sT1}, s{sSt}, 37
s_lshr_b32 s{sT1}, s{sT1}, 8
s_mul_i32 s{sT1}, s{sT1}, 7
s_sub_u32 s{sSt}, s{sSt}, s{sT1}
s_lshl_b32 s{sT1}, s{sSt}, 7
s_add_u32 s{sXo}, s{sXo}, s{sT1}
s_mul_i32 s{sT1}, s{sSt}, {64*3584}
s_add_u32 s{sWo}, s{sWo}, s{sT1}""")
    else:
        P.e(f"s_mov_b32 s{sSt}, 0")
    for n, size in ((sX, XB), (sW1, WB), (sK, XB), (sV, XB), (sW2, WB), (sH, XB), (sWS, WS_END), (sO, XB)):
        P.e(f"s_mov_b32 s{n+2}, {size}\ns_mov_b32 s{n+3}, 0x20000")
    vP0, vP1 = va("P0"), va("P1"); vPh = va("Ph"); vTa = va("Ta"); sHal = sa("Hal")
    P.e(f"""
v_lshl_add_u32 v{vP0}, v{vl7}, 4, v{t3}
v_add_u32 v{vP1}, {7168-1040}, v{vP0}
s_lshl_b32 s{sP0o}, s{sRB}, 2
s_add_u32 s{sP0o}, s{sP0o}, s{sW}
s_mul_i32 s{sP0o}, s{sP0o}, {16*896}
s_lshl_b32 s{sT1}, s{sCB}, 7
s_add_u32 s{sP0o}, s{sP0o}, s{sT1}
s_mul_i32 s{sP0m}, s{sW}, 2080
s_cmp_eq_u32 s{sRB}, 0
s_cselect_b32 s{sT1}, 0x40000000, 0
s_cselect_b32 s{sHal}, 0, 7168
s_sub_u32 s{sHal}, s{sP0o}, s{sHal}
v_add_u32 v{vPh}, s{sT1}, v{vP0}
s_lshl_b32 s{sT1}, s{sW}, 3
v_add_u32 v{vPair}, s{sT1}, v{vl3}
s_lshl_b32 s{sT1}, s{sCB}, 5
v_add_lshl_u32 v{vTa}, v{vPair}, s{sT1}, 2
v_lshlrev_b32 v{t2}, 2, v{vTa}
v_lshlrev_b32 v{vl16}, 4, v0""")
    SU = Stream()
    vXA = [[va(f"XA{h}{k}") for k in range(4)] for h in range(2)]
    vXB = [[va(f"XB{h}{k}") for k in range(4)] for h in range(2)]
    vWA = [[va(f"WA{h}{k}") for k in range(2)] for h in range(2)]
    vSel = va("sel", 4, 4); vZero = va("zero", 4, 4)
    SU.e(f"""
v_lshrrev_b32 v{vl5}, 5, v0
v_and_b32 v{t0}, 31, v0
v_lshl_add_u32 v{t0}, v{t0}, 7, s{sM0a}
v_bfe_u32 v{t1}, v0, 1, 3
v_xor_b32 v{t1}, v{t1}, v{vl5}""")
    for k in range(4):
        SU.e(f"""
v_xor_b32 v{t3}, {2*k}, v{t1}
v_lshl_add_u32 v{vXA[0][k]}, v{t3}, 4, v{t0}
v_xor_b32 v{vXB[0][k]}, 0x1000, v{vXA[0][k]}
v_add_u32 v{vXA[1][k]}, 0x10000, v{vXA[0][k]}
v_add_u32 v{vXB[1][k]}, 0x10000, v{vXB[0][k]}""")
    SU.e(f"""
v_bfe_u32 v{vr_}, v0, 2, 2
v_and_b32 v{t0}, 3, v0
v_lshlrev_b32 v{vlo}, 3, v{t0}
v_and_b32 v{t0}, 16, v0
v_lshl_add_u32 v{vlo}, v{t0}, 1, v{vlo}
v_lshl_add_u32 v{t0}, v{vl5}, 3, v{vr_}
v_lshl_add_u32 v{t0}, v{t0}, 8, v{vlo}
v_add_u32 v{t0}, 16384, v{t0}
s_and_b32 s{sT0}, s{sW}, 1
s_lshl_b32 s{sT0}, s{sT0}, 1
s_lshr_b32 s{sT1}, s{sW}, 1
s_add_u32 s{sT0}, s{sT0}, s{sT1}
v_xor_b32 v{t1}, s{sT0}, v{vr_}
v_lshl_add_u32 v{vWA[0][0]}, v{t1}, 6, v{t0}
v_xor_b32 v{vWA[0][1]}, 64, v{vWA[0][0]}
v_add_u32 v{vWA[1][0]}, 0x10000, v{vWA[0][0]}
v_add_u32 v{vWA[1][1]}, 0x10000, v{vWA[0][1]}
v_lshrrev_b32 v{t0}, 2, v0
v_xor_b32 v{t0}, v{t0}, v{vl4}
v_and_b32 v{t0}, 1, v{t0}
v_cmp_eq_u32 vcc, 0, v{t0}
v_mov_b32 v{t1}, 0x3f803f80
v_mov_b32 v{vZero}, 0
v_cndmask_b32 v{vSel}, 0, v{t1}, vcc
v_mov_b32 v{vZero+1}, 0
v_mov_b32 v{vZero+2}, 0
v_mov_b32 v{vZero+3}, 0
v_mov_b32 v{vSel+1}, v{vSel}
v_mov_b32 v{vSel+2}, v{vSel}
v_mov_b32 v{vSel+3}, v{vSel}""")
    vEW = va("EW"); vER = va("ERx"); vEC = va("ECx")
    SU.e(f"""
v_and_b32 v{t0}, 31, v0
v_lshlrev_b32 v{t0}, 3, v{t0}
s_lshl_b32 s{sT0}, s{sT0}, 8
s_add_u32 s{sT0}, s{sT0}, {L_EXC}
v_add_u32 v{vEC}, s{sT0}, v{t0}
s_lshl_b32 s{sT1}, s{sW}, 8
s_add_u32 s{sT1}, s{sT1}, {L_EX}
v_add_u32 v{vER}, s{sT1}, v{t0}
v_cmp_gt_u32 vcc, 32, v0
v_mov_b32 v{t1}, {L_EXZ}
v_cndmask_b32 v{vEW}, v{vEC}, v{vER}, vcc""")
    SU.e(f"ds_write_b64 v{t1}, {vr(vZero,2)}", tag="exz")
    vK0, vK1, vS0, vKV = va("K0"), va("K1"), va("S0"), va("KV")
    sKVo, sSTo, sF0w, sF3w, sF0r, sF3r, sF1w, sF1r = [sa(n) for n in "KVo STo F0w F3w F0r F3r F1w F1r".split()]
    SU.e(f"""
v_mul_u32_u24 v{t0}, 1040, v{vl7}
v_lshl_add_u32 v{vK0}, v{vPair}, 2, v{t0}
v_add_u32 v{vK0}, {P0K}, v{vK0}
v_add_u32 v{vK1}, 1040, v{vK0}
v_mul_u32_u24 v{t0}, 1040, v{vl5}
v_and_b32 v{t1}, 31, v0
v_lshl_add_u32 v{vS0}, v{t1}, 5, v{t0}
s_add_u32 s{sT0}, s{sP0m}, {P0X}
v_add_u32 v{vS0}, s{sT0}, v{vS0}
v_sub_u32 v{t0}, 7, v{vl7}
v_lshlrev_b32 v{t0}, 4, v{t0}
v_lshl_add_u32 v{vKV}, v{vPair}, 13, v{t0}
s_lshl_b32 s{sKVo}, s{sCB}, 18
s_lshl_b32 s{sT0}, s{sRB}, 7
s_sub_u32 s{sKVo}, s{sKVo}, s{sT0}
s_add_u32 s{sKVo}, s{sKVo}, {WS_KVT + 248*16}
s_mul_i32 s{sSTo}, s{sRB}, 7
s_add_u32 s{sSTo}, s{sSTo}, s{sCB}
s_lshl_b32 s{sSTo}, s{sSTo}, 2
s_add_u32 s{sSTo}, s{sSTo}, s{sW}
s_lshl_b32 s{sSTo}, s{sSTo}, 8
s_add_u32 s{sSTo}, s{sSTo}, {WS_ST}
s_lshr_b32 s{sT0}, s{sRB}, 3
s_lshl_b32 s{sT1}, s{sCB}, 2
s_add_u32 s{sF0w}, s{sT1}, s{sT0}
s_lshl_b32 s{sF0w}, s{sF0w}, 2
s_add_u32 s{sF0w}, s{sF0w}, s{sW}
s_lshl_b32 s{sF0w}, s{sF0w}, 5
s_and_b32 s{sT2}, s{sRB}, 7
s_add_u32 s{sF0w}, s{sF0w}, s{sT2}
s_lshl_b32 s{sF0w}, s{sF0w}, 2
s_add_u32 s{sF0w}, s{sF0w}, {MB0}
s_sub_u32 s{sT2}, 3, s{sW}
s_add_u32 s{sF0r}, s{sT1}, s{sT2}
s_lshl_b32 s{sF0r}, s{sF0r}, 2
s_add_u32 s{sF0r}, s{sF0r}, s{sT0}
s_lshl_b32 s{sF0r}, s{sF0r}, 7
s_add_u32 s{sF0r}, s{sF0r}, {MB0}
s_lshl_b32 s{sF3r}, s{sRB}, 2
s_add_u32 s{sF3r}, s{sF3r}, s{sW}
s_lshl_b32 s{sF3r}, s{sF3r}, 7
s_add_u32 s{sF1r}, s{sF3r}, {MB1}
s_add_u32 s{sF3r}, s{sF3r}, {MB3}
s_lshl_b32 s{sT2}, s{sCB}, 2
s_add_u32 s{sF3w}, s{sF3r}, s{sT2}""")
    sHst, sHo = sa("Hst"), sa("Ho")
    vHS = va("HS")
    SU.e(f"""
s_lshr_b32 s{sT0}, s{sW}, 1
s_lshl_b32 s{sT1}, s{sR}, 1
s_add_u32 s{sT1}, s{sT1}, s{sT0}
s_lshl_b32 s{sT2}, s{sJ}, 1
s_and_b32 s3, s{sW}, 1
s_add_u32 s{sT2}, s{sT2}, s3
s_mul_i32 s{sHst}, s{sT1}, 28
s_add_u32 s{sHst}, s{sHst}, s{sT2}
s_lshl_b32 s{sHst}, s{sHst}, 13
s_add_u32 s{sHst}, s{sHst}, {WS_H}
s_lshl_b32 s3, s3, 12
s_lshl_b32 s{sT0}, s{sT0}, 11
s_add_u32 s3, s3, s{sT0}
v_add_u32 v{vHS}, s3, v{vl16}
s_mul_i32 s3, s{sT2}, 37
s_lshr_b32 s3, s3, 8
s_lshl_b32 s{sF1w}, s{sT1}, 2
s_add_u32 s{sF1w}, s{sF1w}, s3
s_lshl_b32 s{sF1w}, s{sF1w}, 5
s_mul_i32 s3, s3, 7
s_sub_u32 s3, s{sT2}, s3
s_add_u32 s{sF1w}, s{sF1w}, s3
s_lshl_b32 s{sF1w}, s{sF1w}, 2
s_add_u32 s{sF1w}, s{sF1w}, {MB1}
s_mul_i32 s{sHo}, s{sRB}, 28
s_mul_i32 s{sT0}, s{sW}, 7
s_add_u32 s{sHo}, s{sHo}, s{sT0}
s_lshl_b32 s{sHo}, s{sHo}, 13
s_add_u32 s{sHo}, s{sHo}, {WS_H}""")
    vD2 = [va(f"D2{q}") for q in range(4)]; vW2A = [[va(f"W2A{h}{d}") for d in range(2)] for h in range(2)]
    sCHo = sa("CHo")
    SU.e(f"""
v_and_b32 v{t1}, 16, v0
v_lshlrev_b32 v{t1}, 2, v{t1}
v_xor_b32 v{vD2[0]}, v{t1}, v{vP0}
v_add_u32 v{vD2[1]}, 6144, v{vD2[0]}
v_add_u32 v{vD2[2]}, {2*6144}, v{vD2[0]}
v_add_u32 v{vD2[3]}, {3*6144}, v{vD2[0]}
s_mul_i32 s{sW2o}, s{sW}, {448*896}
s_lshl_b32 s{sT2}, s{sCB}, 7
s_add_u32 s{sW2o}, s{sW2o}, s{sT2}
v_lshl_add_u32 v{t0}, v{vl5}, 2, v{vr_}
v_lshl_add_u32 v{t0}, v{t0}, 7, v{vlo}
v_add_u32 v{t0}, s{sM0b}, v{t0}
v_lshrrev_b32 v{t1}, 1, v{vr_}
v_lshl_add_u32 v{vW2A[0][0]}, v{t1}, 6, v{t0}
v_xor_b32 v{vW2A[0][1]}, 64, v{vW2A[0][0]}
v_add_u32 v{vW2A[1][0]}, 0x10000, v{vW2A[0][0]}
v_add_u32 v{vW2A[1][1]}, 0x10000, v{vW2A[0][1]}
s_lshl_b32 s{sCHo}, s{sCB}, 5
s_add_u32 s{sCHo}, s{sCHo}, s{sRB}
s_lshl_b32 s{sCHo}, s{sCHo}, 13""")

    def g1_dma(i):
        s = Stream(); sl = i % 3
        for q in range(4): s.dma(f"buffer_load_dwordx4 v{vDX[q]}, {srd(sX)}, s{sXo} offen offset:{q*1024} lds", (sM0a, sl*SLOT), f"g1d{i}")
        for q in range(4): s.dma(f"buffer_load_dwordx4 v{vDW[q]}, {srd(sW1)}, s{sWo} offen offset:{q*1024} lds", (sM0a, sl*SLOT+16384), f"g1d{i}")
        if i < 6:
            s.glue(f"""s_add_u32 s{sSt}, s{sSt}, 1
s_cmp_eq_u32 s{sSt}, 7
s_cselect_b32 s3, {(128-896) & 0xffffffff}, 128
s_add_u32 s{sXo}, s{sXo}, s3
s_cmp_eq_u32 s{sSt}, 7
s_cselect_b32 s3, {(64*3584-448*3584) & 0xffffffff}, s{sWinc}
s_add_u32 s{sWo}, s{sWo}, s3""".replace(", 128\n", f", s{sXinc}\n"))
        return s
    sXinc, sWinc = sa("Xinc"), sa("Winc")
    P.e(f"s_movk_i32 s{sXinc}, 128\ns_mov_b32 s{sWinc}, {64*3584}")
    vTap = va("tap", 4, 4); vDd = va("Dd")
    def p0_loads():
        s = Stream()
        s.glue(f"s_cmp_lg_u32 s{sW}, 0\ns_cbranch_scc1 NOHALO\ns_mov_b32 m0, {P0K}")
        s[-1].append(I(f"buffer_load_dwordx4 v{vPh}, {srd(sK)}, s{sHal} offen lds", kind="cond"))
        s[-1].append(I("NOHALO:"))
        for sr, base in ((sK, P0K + 1040), (sV, P0V), (sX, P0X)):
            s.dma(f"buffer_load_dwordx4 v{vP0}, {srd(sr)}, s{sP0o} offen lds", (sP0m, base), "p0")
            s.dma(f"buffer_load_dwordx4 v{vP1}, {srd(sr)}, s{sP0o} offen offset:1040 lds", (sP0m, base), "p0")
        return s
    nsu = opt.get("su_early", 60)
    P += SU[:nsu]; SU = SU[nsu:]
    P.wlg("karg")
    P.e(f"s_mov_b64 s[{sX}:{sX+1}], s[4:5]\ns_mov_b64 s[{sW1}:{sW1+1}], s[18:19]\ns_mov_b64 s[{sK}:{sK+1}], s[6:7]\ns_mov_b64 s[{sV}:{sV+1}], s[8:9]")
    if opt.get("probe"):
        base = {"bx": "s[16:17]", "ws": "s[26:27]", "w2": "s[20:21]", "out": "s[22:23]"}[opt["probe"]]
        P.e(f"s_sub_u32 s3, s2, 32\ns_lshl_b32 s3, s3, 2\ns_add_u32 s3, s3, s{sW}\ns_mul_i32 s3, s3, 1792\nv_mov_b32 v{t0}, s3")
        if opt["probe"] == "ws": P.e(f"v_add_u32 v{t0}, 0x1000000, v{t0}")
        for i in range(14):
            P.e(f"global_load_dword v{t1}, v{t0}, {base} offset:{i*128}", tag="probe"); P.wvm("probe")
    small = Stream().e(f"global_load_dwordx4 {vr(vTap,4)}, v{t2}, s[10:11]\nglobal_load_dword v{vDd}, v{vTa}, s[14:15]", tag="p0")
    P.e(f"s_load_dword s{sTAG}, s[26:27], 0", tag="etag")
    if p0pos < 0:
        P += p0_loads(); P += small; P += g1_dma(0)
    else:
        P += g1_dma(0); P += small
    P.e(f"s_mov_b64 s[{sW2}:{sW2+1}], s[20:21]\ns_mov_b64 s[{sH}:{sH+1}], s[12:13]\ns_mov_b64 s[{sWS}:{sWS+1}], s[26:27]\ns_mov_b64 s[{sO}:{sO+1}], s[22:23]")
    if diag: P.e("s_mov_b32 s4, s92")
    stamp(P, "iss0")
    P += SU
    P.wlg("etag")
    P.e(f"s_mul_i32 s{sTAG}, s{sTAG}, {LCG_A}\ns_add_u32 s{sTAG}, s{sTAG}, {LCG_C}\ns_mov_b32 s{sTAG+1}, s{sTAG}")

    vXP = va("XP", 8); vKVf = va("KVf", 16); vDf = va("Df", 2)
    acc = aa("acc", 64, 4)
    NB = 4
    fb = 160
    tmp0 = aa("fb", 64, 4)
    sacc = aa("sacc", 8, 4); hp = aa("hp", 8, 4)
    def phase0(tmp):
        kf = tmp; kraw = tmp + 22; vraw = tmp + 34; tf = tmp + 42; vf = tmp + 50; sx = tmp + 52; pk = tmp + 24
        acc0 = vKVf
        Z = Stream()
        Z.e(f"ds_read2_b32 {vr(kraw,2)}, v{vK0} offset0:160 offset1:192\nds_read_b32 v{kraw+2}, v{vK0} offset:896", tag="k")
        for i in range(4): Z.e(f"ds_read2_b32 {vr(kraw+4+2*i,2)}, v{vK1} offset0:{64*i} offset1:{64*i+32}", tag="k")
        Z.e(f"v_add_u32 v{vK0}, {P0V-P0K}, v{vK0}\nv_add_u32 v{vK1}, {P0X-P0K-1040}, v{vK1}")
        for i in range(4): Z.e(f"ds_read2_b32 {vr(vraw+2*i,2)}, v{vK0} offset0:{64*i} offset1:{64*i+32}", tag="v")
        Z.e(f"ds_read_b128 {vr(sx,4)}, v{vS0}\nds_read_b128 {vr(sx+4,4)}, v{vS0} offset:16", tag="sx")
        for c in range(2):
            for h in range(2):
                Z.e(f"v_lshlrev_b32 v{tf+2*(2*h)+c}, 16, v{vTap+2*c+h}\nv_and_b32 v{tf+2*(2*h+1)+c}, 0xffff0000, v{vTap+2*c+h}")
        Z.e(f"v_lshlrev_b32 v{vDf}, 16, v{vDd}\nv_and_b32 v{vDf+1}, 0xffff0000, v{vDd}")
        Z.wlg("k")
        for i in range(4): Z.e(f"ds_read2_b32 {vr(vXP+2*i,2)}, v{vK1} offset0:{64*i} offset1:{64*i+32}", tag="xp")
        kreg = [kraw, kraw+1, kraw+2] + [kraw+4+i for i in range(8)]
        for i in range(11):
            Z.e(f"v_lshlrev_b32 v{kf+2*i}, 16, v{kreg[i]}\nv_and_b32 v{kf+2*i+1}, 0xffff0000, v{kreg[i]}")
        for i in range(8): Z.e(f"v_pk_mul_f32 {vr(acc0+2*i,2)}, {vr(kf+2*i,2)}, {vr(tf+6,2)}")
        for t in (2, 1, 0):
            for i in range(8): Z.e(f"v_pk_fma_f32 {vr(acc0+2*i,2)}, {vr(kf+2*(i+3-t),2)}, {vr(tf+2*t,2)}, {vr(acc0+2*i,2)}")
        Z.wlg("v")
        for i in range(8):
            Z.e(f"v_lshlrev_b32 v{kf+2*i}, 16, v{vraw+i}\nv_and_b32 v{kf+2*i+1}, 0xffff0000, v{vraw+i}")
        for i in range(8): Z.e(f"v_pk_mul_f32 {vr(acc0+2*i,2)}, {vr(acc0+2*i,2)}, {vr(kf+2*i,2)}")
        for c in range(2):
            for d in range(4): Z.e(f"v_cvt_pk_bf16_f32 v{pk+4*c+d}, v{acc0+2*(7-2*d)+c}, v{acc0+2*(6-2*d)+c}")
        Z.e(f"v_add_u32 v{vK0}, 4096, v{vKV}")
        Z.e(f"""
buffer_store_dwordx4 {vr(pk,4)}, v{vKV}, {srd(sWS)}, s{sKVo} offen sc1
buffer_store_dwordx4 {vr(pk+4,4)}, v{vK0}, {srd(sWS)}, s{sKVo} offen sc1""", tag="p0st")
        Z.wlg("sx")
        Z.e(f"v_mov_b32 v{kf}, 0x3f803f80\nv_mov_b32 v{vf}, 0\nv_mov_b32 v{vf+1}, 0")
        for i in range(8):
            Z.e(f"v_dot2_f32_bf16 v{vf}, v{sx+i}, v{kf}, v{vf}\nv_dot2_f32_bf16 v{vf+1}, v{sx+i}, v{sx+i}, v{vf+1}")
        Z.e(f"v_and_b32 v{kf+1}, 1, v0\nv_cmp_eq_u32 vcc, 1, v{kf+1}\nv_lshlrev_b32 v{kf+1}, 2, v0")
        for perm in ("[1,0,3,2]", "[2,3,0,1]"):
            Z.e(f"""v_add_f32_dpp v{vf}, v{vf}, v{vf} quad_perm:{perm} row_mask:0xf bank_mask:0xf
v_add_f32_dpp v{vf+1}, v{vf+1}, v{vf+1} quad_perm:{perm} row_mask:0xf bank_mask:0xf""")
        Z.e(f"v_cndmask_b32 v{vf}, v{vf}, v{vf+1}, vcc")
        Z.e(f"buffer_store_dword v{vf}, v{kf+1}, {srd(sWS)}, s{sSTo} offen sc1", tag="p0st")
        return Z
    def sprinkle(Z, items):
        out = Stream(); items = list(items)
        step = max(1, len(Z) // (len(items) + 1)); k = 0
        for i, x in enumerate(Z):
            out.append(x)
            if i % step == step - 1 and k < len(items): out.append(items[k]); k += 1
        out += items[k:]
        return out

    def g1_reads(kap):
        i, ks = divmod(kap, 4)
        s = Stream(); sl = i % 3; h = 1 if sl == 2 else 0; base = sl * SLOT if sl < 2 else 0
        b = fb + 16 * (kap % NB); tg = f"fr{kap}"
        s.e(f"ds_read_b128 {ar(b,4)}, v{vXA[h][ks]} offset:{base}", tag=tg)
        for hh in range(2): s.e(f"ds_read_b64_tr_b16 {ar(b+8+2*hh,2)}, v{vWA[h][0]} offset:{base+ks*4096+hh*1024}", tag=tg)
        s.e(f"ds_read_b128 {ar(b+4,4)}, v{vXB[h][ks]} offset:{base}", tag=tg)
        for hh in range(2): s.e(f"ds_read_b64_tr_b16 {ar(b+12+2*hh,2)}, v{vWA[h][1]} offset:{base+ks*4096+hh*1024}", tag=tg)
        return s
    TILES = ((0, 0), (0, 1), (1, 0), (1, 1))
    def mf(kap, f, st):
        b = fb + 16 * (kap % NB); a = acc + (2*f+st)*16
        return f"v_mfma_f32_32x32x16_bf16 {vr(a,16)}, {ar(b+8+4*f,4)}, {ar(b+4*st,4)}, {'0' if kap == 0 else vr(a,16)}"
    def ms(kap, which):
        b = fb + 16 * (kap % NB); a = sacc + 4 * which
        return f"v_mfma_f32_16x16x32_bf16 {vr(a,4)}, {vr(vSel,4)}, {ar(b+8*which,4)}, {'0' if kap == 0 else vr(a,4)}"
    W2B = {0: SLOT, 1: SLOT + 4096, 2: 2*SLOT, 3: 2*SLOT + 4096, 4: 0, 5: 4096}
    W2MAP = [0, 1, 2, 3, 0, 1, 4, 5, 2, 3, 0, 1, 4, 5]
    W2PREV = {4: 0, 5: 1, 8: 2, 9: 3, 10: 4, 11: 5, 12: 6, 13: 7}
    def w2_dma(g):
        s = Stream(); b = W2B[W2MAP[g]]
        if g in W2PREV: s.wlg(f"w2r{W2PREV[g]}")
        for q in range(4): s.dma(f"buffer_load_dwordx4 v{vD2[q]}, {srd(sW2)}, s{sW2o} offen offset:{q*1024} lds", (sM0b, b), f"w2d{g}")
        s.e(f"s_add_u32 s{sW2o}, s{sW2o}, {32*896}")
        return s
    def w2_read(g):
        s = Stream(); b = W2B[W2MAP[g]]; h = 1 if b >= 65536 else 0; b -= h * 65536
        s.wvm(f"w2d{g}")
        for kbl in range(2):
            for dt in range(2):
                a = ((2*g + kbl) * 2 + dt) * 4
                for hh in range(2):
                    s.e(f"ds_read_b64_tr_b16 {ar(a+2*hh,2)}, v{vW2A[h][dt]} offset:{b + kbl*2048 + hh*1024}", tag=f"w2r{g}")
        return s
    vSS = va("SS", 8, 4); vCAw = vP1; vCA, vCB = vPh, vTa
    def convA_load():
        s = Stream()
        s.glue(f"s_lshl_b32 s3, s{sW}, 11\ns_add_u32 s3, s3, s{sCHo}\nbuffer_load_dwordx4 {vr(vSS,4)}, v{vl16}, {srd(sH)}, s3 offen\nbuffer_load_dwordx4 {vr(vSS+4,4)}, v{vl16}, {srd(sH)}, s3 offen offset:1024", tag="ss")
        return s
    u0, u1 = vS0, vK1
    def convA_write():
        s = Stream()
        s.glue(f"""
s_lshr_b32 s3, s{sW}, 1
s_mul_i32 s3, s3, {16640 - 4096}
s_add_u32 s3, s3, {CA}
v_add_u32 v{vCAw}, s3, v{vl16}
s_lshl_b32 s3, s{sW}, 11
v_add_u32 v{vCAw}, s3, v{vCAw}""")
        s.glue(f"""
s_lshr_b32 s3, s{sW}, 1
s_mul_i32 s3, s3, 16640
s_add_u32 s3, s3, {CA}
v_and_b32 v{u0}, 15, v0
v_add_u32 v{u1}, v{u0}, v{vl4}
v_cmp_gt_u32 vcc, 15, v{u1}
v_mul_u32_u24 v{u1}, 1040, v{vl4}
v_add_lshl_u32 v{u0}, v{u0}, v{u1}, 2
v_add_u32 v{u0}, s3, v{u0}
v_mov_b32 v{u1}, {L_EXZ+8}
v_cndmask_b32 v{u0}, v{u1}, v{u0}, vcc""")
        s.e(f"ds_write_b32 v{u0}, v{vZero}", tag="caw")
        s.glue(f"""
v_min_u32 v{u1}, 29, v0
s_mul_i32 s3, s{sW}, 4576
s_add_u32 s3, s3, {CB + 4096}
v_lshl_add_u32 v{u1}, v{u1}, 4, s3""")
        s.e(f"ds_write_b128 v{u1}, {vr(vZero,4)}", tag="caw")
        s.wvm("ss")
        for q in range(2):
            d = vSS + 4*q
            s.e(f"ds_write_b128 v{vCAw}, {vr(d,4)} offset:{3*4160 + 48 + q*1024}", tag="caw")
            s.e(f"ds_write_b64 v{vCAw}, {vr(d,2)} offset:{4160 + 56 + q*1024}\nds_write_b64 v{vCAw}, {vr(d+2,2)} offset:{4160 + 64 + q*1024}", tag="caw")
            for m0 in (0, 2):
                for k in range(4): s.e(f"ds_write_b32 v{vCAw}, v{d+k} offset:{m0*4160 + (15-m0+k)*4 + q*1024}", tag="caw")
        s.glue(f"""
v_and_b32 v{u0}, 3, v0
v_mul_u32_u24 v{u0}, 4160, v{u0}
v_add_u32 v{u1}, v{vr_}, v{vl4}
v_lshl_add_u32 v{u0}, v{u1}, 4, v{u0}
s_lshr_b32 s3, s{sW}, 1
s_mul_i32 s3, s3, {16640 - 512}
s_add_u32 s3, s3, {CA}
v_add_u32 v{vCA}, s3, v{u0}
s_lshl_b32 s3, s{sW}, 8
v_add_u32 v{vCA}, s3, v{vCA}""")
        s.glue(f"""
v_and_b32 v{u0}, 1, v0
v_mul_u32_u24 v{u0}, 4576, v{u0}
v_bfe_u32 v{u1}, v0, 1, 3
v_lshlrev_b32 v{u1}, 2, v{u1}
v_sub_u32 v{u1}, v{vl4}, v{u1}
v_lshl_add_u32 v{u0}, v{u1}, 4, v{u0}
s_lshr_b32 s3, s{sW}, 1
s_mul_i32 s3, s3, {9152 - 512}
s_add_u32 s3, s3, {CB + 28*16}
v_add_u32 v{vCB}, s3, v{u0}
s_lshl_b32 s3, s{sW}, 8
v_add_u32 v{vCB}, s3, v{vCB}""")
        return s
    vU = vSS; vUn = vTap
    def u_loads():
        s = Stream()
        s.wlg("caw")
        s.glue(f"""
s_cmp_eq_u32 s{sW}, 3
s_cselect_b32 s3, 0x40000000, 0
v_mov_b32 v{u0}, s3
s_lshl_b32 s3, s{sW}, 10
s_add_u32 s3, s3, s{sCHo}
s_add_u32 s3, s3, {WS_KVT}
buffer_load_dwordx4 {vr(vU,4)}, v{vl16}, {srd(sWS)}, s3 offen sc1
buffer_load_dword v{vUn}, v{u0}, {srd(sWS)}, s3 offen offset:1024 sc1
s_add_u32 s3, s3, 4096
buffer_load_dwordx4 {vr(vU+4,4)}, v{vl16}, {srd(sWS)}, s3 offen sc1
buffer_load_dword v{vUn+1}, v{u0}, {srd(sWS)}, s3 offen offset:1024 sc1""", tag="u")
        return s

    SC = Sched()
    if p0pos < 0:
        P.wvm("p0"); P.e("s_barrier")
        stamp(P, "p0go")
        P += sprinkle(phase0(tmp0), list(g1_dma(1)) + list(g1_dma(2)))
        P.wlg("ALL")
        stamp(P, "p0done")
        sig_step = opt.get("sig0", 2)
    else:
        P += p0_loads(); P += g1_dma(1)
        SC.add(g1_dma(2), 0, "g1")
        sig_step = opt.get("sig0", 4 * p0pos + 6)
    sg = Stream(); signal(sg, "p0st", sF0w, sF3w)
    P.wvm("g1d0"); P.e("s_barrier")
    stamp(P, "g1go")
    P += g1_reads(0); P += g1_reads(1)
    ca_step = max(6, 4 * p0pos + 7)
    SC.add(convA_load(), ca_step - 4, "cal")
    SC.add(convA_write(), ca_step, "caw", after="cal")
    ISS, STR = opt.get("iss", 56), opt.get("str", 176)
    for kap in range(24):
        i, ks = divmod(kap, 4)
        if ks == 2:
            if i == 5:
                P += SC.flush("caw")
                poll_check(P, sF0r, "poll0", 8)
            P.wlg("LDS"); P.wvm(f"g1d{i+1}")
            if i == p0pos: P.wvm("p0")
            P.e("s_barrier")
            stamp(P, f"g1b_{i}")
            if i == p0pos:
                P += phase0(tmp0)
            if i + 3 <= 6: SC.chains.insert(0, {"q": list(g1_dma(i + 3)), "e": 0, "name": "g1", "after": None})
            if i == 4:
                poll_issue(P, sF0r, "poll0")
                SC.add(list(w2_dma(0)) + list(w2_dma(1)), 0, "w2")
            if i == 5:
                SC.extend("w2", list(u_loads()) + list(w2_dma(2)) + list(w2_read(0)) + list(w2_dma(3)) + list(w2_read(1)) + list(w2_dma(4)) + list(w2_dma(5)))
        if kap == sig_step: P += sg
        P.wlg(f"fr{kap}")
        M = Stream()
        for (f, st) in TILES:
            M.e(mf(kap, f, st))
            if (f, st) == (0, 0): M.e(ms(kap, 0))
            if (f, st) == (1, 0): M.e(ms(kap, 1))
        side = SC.take(kap, ISS, STR)
        if ks == 1 and i + 2 <= 6: side += SC.flush("g1")
        P += merge(M, (g1_reads(kap + 2), 0, 6), side)
    P.wlg("fr24")
    M = Stream()
    for (f, st) in TILES:
        M.e(mf(24, f, st))
        if (f, st) == (0, 0): M.e(ms(24, 0))
        if (f, st) == (1, 0): M.e(ms(24, 1))
    P += merge(M, (list(g1_reads(26)) + list(g1_reads(27)), 0, 5), SC.take(24, 24, STR))
    P.wlg("fr25"); P.e(ms(25, 0) + "\n" + ms(25, 1))
    P.wlg("fr26"); P.e(ms(26, 0) + "\n" + ms(26, 1))
    P.wlg("fr27"); P.e(ms(27, 0) + "\n" + ms(27, 1))
    ex = fb + 16 * (24 % NB)
    X = Stream()
    for r in (2, 3, 6, 7, 10, 11, 14, 15): X.e(f"v_accvgpr_write_b32 a{ex+r}, 0")
    X.e(f"""
v_mul_f32 v{t0}, {-1.0/448!r}, v{sacc}
v_and_b32 v{t2}, 0xffff0000, v{sacc+4}
v_cvt_pk_bf16_f32 v{t0}, v{t0}, v{t0}
v_sub_f32 v{t3}, v{sacc+4}, v{t2}
v_and_b32 v{t1}, 0xffff, v{t0}
v_and_b32 v{sacc}, 0xffff0000, v{t3}
v_sub_f32 v{t3}, v{t3}, v{sacc}
v_lshrrev_b32 v{t2}, 16, v{t2}
v_cmp_gt_u32 vcc, 32, v0
v_or_b32 v{t2}, v{t2}, v{sacc}
v_lshrrev_b32 v{t3}, 16, v{t3}
v_cndmask_b32 v{sacc+2}, v{t2}, v{t0}, vcc
v_cndmask_b32 v{sacc+3}, v{t3}, v{t1}, vcc""")
    X.e(f"ds_write_b64 v{vEW}, {vr(sacc+2,2)}", tag="exw")
    X.e(f"""
v_mov_b32 v{t1}, {L_EXZ}
v_xor_b32 v{t0}, 256, v{vER}
v_cndmask_b32 v{vER}, v{t1}, v{vER}, vcc
v_cndmask_b32 v{t0}, v{t1}, v{t0}, vcc
v_xor_b32 v{t1}, 256, v{vEC}""")
    M = Stream()
    for (f, st) in TILES: M.e(mf(25, f, st))
    P += merge(M, X)
    P.wlg("LDS"); P.e("s_barrier")
    P.e(f"""
ds_read_b64 {ar(ex,2)}, v{vER}
ds_read_b64 {ar(ex+8,2)}, v{vEC}
ds_read_b64 {ar(ex+4,2)}, v{t0}
ds_read_b64 {ar(ex+12,2)}, v{t1}""", tag="exr")
    SC.extend("w2", list(w2_dma(6)) + list(w2_dma(7)))
    hx = {(0, 0): 0, (0, 1): 0x1000, (1, 0): 0x800, (1, 1): 0x1800}
    def epi(f, st):
        s = Stream(); a = acc + (2*f+st)*16
        if hx[(f, st)]: s.e(f"v_xor_b32 v{t2}, {hx[(f,st)]}, v{vHS}")
        ad = t2 if hx[(f, st)] else vHS
        for e in range(2):
            o = hp + 4 * e
            for r in range(4): s.e(f"v_cvt_pk_bf16_f32 v{o+r}, v{a+8*e+2*r}, v{a+8*e+2*r+1}")
            for r in range(4): s.e(f"v_pk_max_i16 v{o+r}, v{o+r}, 0")
            s.e(f"buffer_store_dwordx4 {vr(o,4)}, v{ad}, {srd(sWS)}, s{sHst} offen offset:{e*1024} sc1", tag="hst")
        return s
    T = TILES
    M = Stream()
    M.e(mf(26, *T[0]) + "\n" + mf(27, *T[0]) + "\n" + mf(26, *T[1]))
    M.wlg("exr")
    M.e(mf(24, *T[0]) + "\n" + mf(27, *T[1]) + "\n" + mf(24, *T[1]))
    for t in (2, 3): M.e(mf(26, *T[t]) + "\n" + mf(27, *T[t]) + "\n" + mf(24, *T[t]))
    pre = SC.flush()
    P += merge(M, (pre, 0, 5), (epi(*T[0]), 5, 8), (epi(*T[1]), 8, 10), (epi(*T[2]), 10, 12))
    stamp(P, "g1done")
    us = tmp0
    P.wvm("u")
    for c in range(2):
        P.e(f"v_mov_b32_dpp v{vUn+c}, v{vU+4*c} wave_shl:1 row_mask:0xf bank_mask:0xf")
    P.e(f"s_lshl_b32 s3, s{sW}, 10\ns_add_u32 s3, s3, {CB}\nv_add_u32 v{u0}, s3, v{vl16}")
    P.e(f"ds_write_b128 v{u0}, {vr(vU,4)} offset:4576\nds_write_b128 v{u0}, {vr(vU+4,4)} offset:{9152+4576}", tag="uw")
    for c in range(2):
        for d in range(3): P.e(f"v_alignbyte_b32 v{us+4*c+d}, v{vU+4*c+d+1}, v{vU+4*c+d}, 2")
        P.e(f"v_alignbyte_b32 v{us+4*c+3}, v{vUn+c}, v{vU+4*c+3}, 2")
        P.e(f"ds_write_b128 v{u0}, {vr(us+4*c,4)} offset:{9152*c}", tag="uw")
    P += epi(*T[3])
    stamp(P, "hst")
    P.wlg("LDS"); P.e("s_barrier")
    AR.release("acc", "fb", "sacc", "hp")

    cf = aa("cf", 128, 4); vSt = aa("st", 16, 4)
    cacc = 224
    def conv_reads(s_):
        s = Stream(); b = cf + 64 * (s_ % 2)
        for i in range(8):
            s.e(f"ds_read_b128 {vr(b+4*i,4)}, v{vCA} offset:{i*512 + s_*64}", tag=f"cA{s_}_{i}")
            s.e(f"ds_read_b128 {vr(b+32+4*i,4)}, v{vCB} offset:{(7-i)*512 + s_*64}", tag=f"cB{s_}_{i}")
        return s
    def conv_mfma(s_):
        s = Stream(); b = cf + 64 * (s_ % 2)
        done = set()
        for n in range(8):
            s.wlg(f"cA{s_}_{n}", f"cB{s_}_{n}")
            prods = [(i, r) for i in range(n + 1) for r in range(n + 1) if i + r <= 7 and (i, r) not in done]
            prods.sort(key=lambda p: (min(p), p))
            for (i, r) in prods:
                done.add((i, r)); t = cacc + 4 * (i + r)
                first = (s_ == 0 and not any((a + c == i + r) and (a, c) != (i, r) for (a, c) in done))
                s.e(f"v_mfma_f32_16x16x32_bf16 {ar(t,4)}, {vr(b+4*i,4)}, {vr(b+32+4*r,4)}, {'0' if first else ar(t,4)}")
        return s
    P += conv_reads(0)
    side = Stream()
    for g in range(2, 8): side += w2_read(g); side += w2_dma(g + 6)
    side = list(side)
    nq = opt.get("w2steps", 3)
    q4 = -(-len(side) // nq)
    for h in range(2):
        for k in range(4): V.release(f"XA{h}{k}", f"XB{h}{k}")
        for k in range(2): V.release(f"WA{h}{k}")
    for q in range(4): V.release(f"DX{q}", f"DW{q}")
    vGW = [va(f"GW{q}") for q in range(4)]; vGR, vGR2, vAW, vAR, vOut, vCW, vCR, vYA, vSA, vMA, vRA = [va(n) for n in "GR GR2 AW AR out CW CR YA SA MA RA".split()]
    sYst, sYld, sOo, sF2w, sF2r, sSTl = sXo, sWo, sSt, sP0o, sP0m, sHal
    TS = Stream()
    TS.e(f"""
v_and_b32 v{t0}, 15, v0
v_lshlrev_b32 v{t1}, 2, v{vl4}
v_xor_b32 v{t0}, v{t0}, v{t1}
v_lshlrev_b32 v{t0}, 4, v{t0}
v_lshl_add_u32 v{t0}, v{vl4}, 8, v{t0}
s_add_u32 s{sT0}, s{sM0b}, {CA}
v_add_u32 v{vCW}, s{sT0}, v{t0}
v_and_b32 v{t1}, 3, v0
v_lshlrev_b32 v{t2}, 2, v{vl4}
v_bfe_u32 v{t3}, v0, 2, 1
v_lshl_add_u32 v{t2}, v{t3}, 1, v{t2}
v_bfe_u32 v{t3}, v0, 3, 1
v_add_u32 v{t2}, v{t2}, v{t3}
v_lshlrev_b32 v{t3}, 2, v{t1}
v_xor_b32 v{t2}, v{t2}, v{t3}
v_lshlrev_b32 v{t2}, 4, v{t2}
v_lshl_add_u32 v{t2}, v{t1}, 8, v{t2}
s_lshl_b32 s{sT1}, s{sW}, 11
s_add_u32 s{sT0}, s{sT1}, {CA}
v_add_u32 v{vCR}, s{sT0}, v{t2}
s_add_u32 s{sYst}, s{sCHo}, s{sT1}
s_add_u32 s{sYst}, s{sYst}, {WS_Y2}
s_add_u32 s{sF2w}, s{sF0w}, {MB2 - MB0}
s_lshl_b32 s{sF2r}, s{sCB}, 2
s_add_u32 s{sF2r}, s{sF2r}, s{sW}
s_lshl_b32 s{sF2r}, s{sF2r}, 2
s_lshr_b32 s{sT0}, s{sRB}, 3
s_add_u32 s{sF2r}, s{sF2r}, s{sT0}
s_lshl_b32 s{sF2r}, s{sF2r}, 7
s_add_u32 s{sF2r}, s{sF2r}, {MB2}
s_lshl_b32 s{sYld}, s{sCB}, 18
s_lshl_b32 s{sT0}, s{sRB}, 8
s_add_u32 s{sYld}, s{sYld}, s{sT0}
s_add_u32 s{sYld}, s{sYld}, {WS_Y2}
v_lshlrev_b32 v{t0}, 13, v{vPair}
v_lshl_add_u32 v{vYA}, v{vl7}, 4, v{t0}
s_mul_i32 s{sOo}, s{sRB}, {64*896}
s_lshl_b32 s{sT1}, s{sCB}, 7
s_add_u32 s{sOo}, s{sOo}, s{sT1}
v_and_b32 v{t0}, 31, v0
v_lshlrev_b32 v{t0}, 8, v{t0}
v_add_u32 v{t0}, s{sM0b}, v{t0}
v_xor_b32 v{t1}, v{vl7}, v{vl5}""")
    for q in range(4): TS.e(f"v_xor_b32 v{t2}, {2*q}, v{t1}\nv_lshl_add_u32 v{vGW[q]}, v{t2}, 4, v{t0}")
    TS.e(f"""
v_lshlrev_b32 v{t0}, 1, v{vl7}
v_xor_b32 v{t0}, v{t0}, v{vl3}
v_lshlrev_b32 v{t1}, 8, v{vPair}
v_lshl_add_u32 v{vGR}, v{t0}, 4, v{t1}
v_xor_b32 v{vGR2}, 16, v{vGR}
s_lshl_b32 s{sT0}, s{sW}, 4
v_xor_b32 v{vAR}, s{sT0}, v{vGR}
v_add_u32 v{vAR}, {L_AP}, v{vAR}
v_lshrrev_b32 v{t0}, 1, v{vPair}
v_xor_b32 v{t0}, v{t0}, v{vl7}
v_lshlrev_b32 v{t0}, 4, v{t0}
v_and_b32 v{t1}, 1, v{vPair}
v_lshl_add_u32 v{t0}, v{t1}, 3, v{t0}
v_lshl_add_u32 v{t0}, v{vl7}, 11, v{t0}
v_add_u32 v{vAW}, {L_AP}, v{t0}
v_mul_u32_u24 v{t0}, 896, v{vPair}
v_lshl_add_u32 v{vOut}, v{vl7}, 4, v{t0}
v_lshlrev_b32 v{t0}, 6, v{vl7}
v_add_u32 v{vMA}, {L_STT}, v{t0}
v_lshlrev_b32 v{t1}, 3, v{vPair}
v_add_u32 v{vRA}, {L_STT}, v{t1}
s_mul_i32 s{sSTl}, s{sRB}, 7168
s_lshl_b32 s{sT0}, s{sW}, 8
s_add_u32 s{sSTl}, s{sSTl}, s{sT0}
s_add_u32 s{sSTl}, s{sSTl}, {WS_ST}
v_and_b32 v{t0}, 15, v0
v_lshlrev_b32 v{t0}, 4, v{t0}
v_lshl_add_u32 v{vSA}, v{vl4}, 10, v{t0}""")
    STL = Stream()
    poll_check(STL, sF3r, "poll3", 7)
    STL.e(f"""
v_add_u32 v{t2}, 4096, v{vSA}
v_cmp_gt_u32 vcc, 48, v0
v_bfrev_b32 v{t3}, 2
v_cndmask_b32 v{t2}, v{t3}, v{t2}, vcc""")
    STL.e(f"buffer_load_dwordx2 {vr(vSt,2)}, v{vSA}, {srd(sWS)}, s{sSTl} offen sc1\nbuffer_load_dwordx2 {vr(vSt+2,2)}, v{t2}, {srd(sWS)}, s{sSTl} offen sc1", tag="st")
    p3 = Stream(); poll_issue(p3, sF3r, "poll3")
    sgh = Stream(); signal(sgh, "hst", sF1w)
    pub = opt.get("pubh", 2 * 36 + 18)
    for s_ in range(4):
        stamp(P, f"cv_{s_}")
        fill = []
        if s_ < 3: fill.append((conv_reads(s_ + 1), 4, 32))
        fill.append(side[s_ * q4:(s_ + 1) * q4])
        if s_ == 0: fill.append((p3, 0, 1)); fill.append(TS[:40])
        if s_ == 1: fill.append((TS[40:], 0, 28)); fill.append((STL, 30, 36))
        if pub // 36 == s_: fill.append((sgh, pub % 36, pub % 36 + 1))
        P += merge(conv_mfma(s_), *fill)
    stamp(P, "convdone")
    if pub >= 144: P += sgh
    P.e("s_barrier")
    for t in range(8): P.e(f"ds_write_b128 v{vCW}, {ar(cacc+4*t,4)} offset:{t*1024}", tag="cw")
    P.wvm("st")
    bfr = lambda r: f"v_cvt_pk_bf16_f32 v{r}, v{r}, v{r}\nv_lshlrev_b32 v{r}, 16, v{r}"
    P.e(f"""
v_pk_add_f32 {vr(vSt,2)}, {vr(vSt,2)}, {vr(vSt+2,2)}
v_mov_b32 v{vSt+2}, v{vSt}
v_mov_b32 v{vSt+3}, v{vSt+1}
v_permlane32_swap_b32 v{vSt}, v{vSt+2}
v_permlane32_swap_b32 v{vSt+1}, v{vSt+3}
v_pk_add_f32 {vr(vSt,2)}, {vr(vSt,2)}, {vr(vSt+2,2)}
v_mov_b32 v{vSt+2}, v{vSt}
v_mov_b32 v{vSt+3}, v{vSt+1}
v_permlane16_swap_b32 v{vSt}, v{vSt+2}
v_permlane16_swap_b32 v{vSt+1}, v{vSt+3}
v_pk_add_f32 {vr(vSt,2)}, {vr(vSt,2)}, {vr(vSt+2,2)}
v_mul_f32 v{vSt}, {1.0/448!r}, v{vSt}
v_mul_f32 v{vSt+1}, {1.0/448!r}, v{vSt+1}
v_fma_f32 v{vSt+1}, -v{vSt}, v{vSt}, v{vSt+1}
v_max_f32 v{vSt+1}, 0, v{vSt+1}
{bfr(vSt)}
{bfr(vSt+1)}
v_add_f32 v{vSt+1}, 0x3727c5ac, v{vSt+1}
{bfr(vSt+1)}
v_sqrt_f32 v{vSt+1}, v{vSt+1}
{bfr(vSt+1)}
v_rcp_f32 v{vSt+1}, v{vSt+1}
s_lshl_b32 s{sT0}, s{sW}, 7
s_add_u32 s{sT0}, s{sT0}, {L_STT}
v_and_b32 v{t0}, 15, v0
v_lshl_add_u32 v{t0}, v{t0}, 3, s{sT0}""")
    P.e(f"ds_write_b64 v{t0}, {vr(vSt,2)}", tag="stw")
    P.wlg("LDS"); P.e("s_barrier")
    yr = cf
    for tt in range(2):
        for w in range(4): P.e(f"ds_read_b128 {vr(yr+16*tt+4*w,4)}, v{vCR} offset:{w*8192+tt*1024}", tag=f"yr{tt}")
    vMR = vSt; vRr = va("rr", 2); vY = vSS
    for q in range(4): P.e(f"ds_read_b128 {vr(vMR+4*q,4)}, v{vMA} offset:{16*q}", tag="mr")
    P.e(f"ds_read_b32 v{vRr}, v{vRA} offset:4\nds_read_b32 v{vRr+1}, v{vRA} offset:{256+4}", tag="mr")
    poll_issue(P, sF1r, "poll1")
    for tt in range(2):
        P.wlg(f"yr{tt}")
        b = yr + 16 * tt
        P.e(f"""
v_pk_add_f32 {vr(b,2)}, {vr(b,2)}, {vr(b+4,2)}
v_pk_add_f32 {vr(b+2,2)}, {vr(b+2,2)}, {vr(b+6,2)}
v_pk_add_f32 {vr(b+8,2)}, {vr(b+8,2)}, {vr(b+12,2)}
v_pk_add_f32 {vr(b+10,2)}, {vr(b+10,2)}, {vr(b+14,2)}""")
        for r in range(4): P.e(f"v_cvt_pk_bf16_f32 v{b+4+r}, v{b+r}, v{b+8+r}")
        P.e(f"buffer_store_dwordx4 {vr(b+4,4)}, v{vl16}, {srd(sWS)}, s{sYst} offen offset:{tt*1024} sc1", tag="yst")
    stamp(P, "yst")
    poll_check(P, sF1r, "poll1", 7)
    stamp(P, "g2go")
    NH = 16; hf = cf + 64; gacc = cf
    order = [(st, c, kb) for st in range(2) for c in range(7) for kb in range(4)]
    def hload(n):
        st, c, kb = order[n]
        s = Stream()
        txt = f"buffer_load_dwordx4 {vr(hf+4*(n%NH),4)}, v{vl16}, {srd(sWS)}, s{sHo} offen offset:{kb*1024} sc1"
        if kb == 3:
            adv = 8192 if c < 6 else (4096 - 6*8192)
            s.glue(txt + (f"\ns_add_u32 s{sHo}, s{sHo}, {adv & 0xffffffff}" if n < 55 else ""), tag=f"h{n}")
        else: s.e(txt, tag=f"h{n}")
        return s
    NPRE = opt.get("npre", 12)
    for n in range(NPRE): P += hload(n)
    V.release("sel", "D20", "D21", "D22", "D23", "tap", "EW", "ERx", "ECx", "K0", "KV", "HS", "Dd", "P0")
    xf = vKVf
    XN = Stream()
    XN.wlg("mr")
    xt = va("xt", 2)
    for i in range(8):
        m2 = vMR + 2 * i
        XN.e(f"""
v_lshlrev_b32 v{xt}, 16, v{vXP+i}
v_and_b32 v{xt+1}, 0xffff0000, v{vXP+i}
v_pk_mul_f32 {vr(vKVf+2*i,2)}, {vr(vKVf+2*i,2)}, {vr(vDf,2)}
v_pk_add_f32 {vr(t0+1,2)}, {vr(xt,2)}, {vr(m2,2)} op_sel_hi:[1,0] neg_lo:[0,1] neg_hi:[0,1]
v_pk_mul_f32 {vr(m2,2)}, {vr(t0+1,2)}, {vr(m2,2)} op_sel:[0,1] op_sel_hi:[1,1]
v_pk_fma_f32 {vr(xf+2*i,2)}, {vr(m2,2)}, {vr(vKVf+2*i,2)}, {vr(xt,2)}""")
    assert (t0 + 1) % 2 == 0
    P += XN
    def g2_part(lo, hi):
        s = Stream()
        for n in range(lo, hi):
            st, c, kb = order[n]
            s.wvm(f"h{n}")
            g = (4*c + kb) // 2
            if st == 0 and g >= 8: s.wlg(f"w2r{g}")
            for dt in range(2):
                a = gacc + (2*dt+st)*16; wa = ((4*c + kb) * 2 + dt) * 4
                s.e(f"v_mfma_f32_32x32x16_bf16 {vr(a,16)}, {ar(wa,4)}, {vr(hf+4*(n%NH),4)}, {'0' if (c, kb) == (0, 0) else vr(a,16)}")
            if n + NPRE < 56: s += hload(n + NPRE)
        return s
    def gwrite(st):
        s = Stream()
        for dt in range(2):
            for q in range(4):
                s.e(f"ds_write_b128 v{vGW[q]}, {vr(gacc+(2*dt+st)*16+4*q,4)} offset:{st*SLOT+dt*128}", tag=f"gw{st}")
        return s
    late = Stream()
    for g in range(8, 14): late += w2_read(g)
    sgy = Stream(); signal(sgy, "yst", sF2w)
    P += merge(g2_part(0, 28), (sgy, 0, 1), (late, 1, 26))
    def gread(st, b):
        s = Stream()
        for w in range(4):
            s.e(f"ds_read_b128 {vr(b+8*w,4)}, v{vGR} offset:{w*8192+st*SLOT}\nds_read_b128 {vr(b+8*w+4,4)}, v{vGR2} offset:{w*8192+st*SLOT}", tag=f"rd{st}")
        return s
    R0 = Stream()
    R0.wlg("gw0"); R0.e("s_barrier")
    lo0, hi0 = gacc, gacc + 32
    for w in range(4):
        b = (lo0 if w < 2 else hi0) + 8 * (w % 2)
        R0.e(f"ds_read_b128 {vr(b,4)}, v{vGR} offset:{w*8192}\nds_read_b128 {vr(b+4,4)}, v{vGR2} offset:{w*8192}", tag="rd0")
    R0.wlg("rd0")
    for r in range(8): R0.e(f"v_add_f32 v{lo0+r}, v{lo0+r}, v{lo0+8+r}\nv_add_f32 v{hi0+r}, v{hi0+r}, v{hi0+8+r}")
    for r in range(8): R0.e(f"v_add_f32 v{lo0+r}, v{lo0+r}, v{hi0+r}")
    yp = Stream(); poll_issue(yp, sF2r, "poll2")
    yl = Stream()
    poll_check(yl, sF2r, "poll2", 8)
    yl.e(f"buffer_load_dwordx4 {vr(vY,4)}, v{vYA}, {srd(sWS)}, s{sYld} offen sc1\nbuffer_load_dwordx4 {vr(vY+4,4)}, v{vYA}, {srd(sWS)}, s{sYld} offen offset:128 sc1", tag="y")
    AP = Stream()
    AP.wvm("y")
    for i in range(8):
        yreg = vY + (i % 2) * 4 + i // 2
        AP.e(f"""
v_lshlrev_b32 v{t1}, 16, v{yreg}
v_and_b32 v{t2}, 0xffff0000, v{yreg}
v_fma_f32 v{xf+2*i}, v{vMR+2*i}, v{t1}, v{xf+2*i}
v_fma_f32 v{xf+2*i+1}, v{vMR+2*i+1}, v{t2}, v{xf+2*i+1}
v_xor_b32 v{t0 if i % 2 else t3}, {i*16}, v{vAW}""")
        AP.e(f"ds_write_b64 v{t0 if i % 2 else t3}, {vr(xf+2*i,2)} offset:{i*256}", tag="aw")
    ypos = opt.get("ypos", 24)
    aplo = opt.get("aplo", 46)
    P += merge(g2_part(28, 56), (gwrite(0), 2, 10), (R0, 12, 23), (yp, ypos, ypos+1), (yl, ypos + 8, ypos + 10), (AP, aplo, 56))
    stamp(P, "g2done")
    P += gwrite(1)
    P.e(f"v_xor_b32 v{t3}, 16, v{vAR}\nv_xor_b32 v{t0}, 64, v{vAR}\nv_xor_b32 v{t1}, 80, v{vAR}\ns_add_u32 s{sT1}, s{sOo}, {32*896}")
    P.wlg("LDS"); P.e("s_barrier")
    stamp(P, "lastbar")
    rd = hf
    P.e(f"ds_read_b128 {vr(rd+32,4)}, v{vAR}\nds_read_b128 {vr(rd+36,4)}, v{t3}", tag="ra0")
    P += gread(1, rd)
    P.e(f"ds_read_b128 {vr(rd+40,4)}, v{t0} offset:8192\nds_read_b128 {vr(rd+44,4)}, v{t1} offset:8192", tag="ra1")
    ost = opt.get("ost", "")
    P.wlg("ra0")
    for r in range(0, 8, 2): P.e(f"v_pk_fma_f32 {vr(lo0+r,2)}, {vr(lo0+r,2)}, {vr(vRr,2)}, {vr(rd+32+r,2)} op_sel:[0,0,0] op_sel_hi:[1,0,1]")
    for r in range(4): P.e(f"v_cvt_pk_bf16_f32 v{lo0+8+r}, v{lo0+2*r}, v{lo0+2*r+1}")
    P.e(f"buffer_store_dwordx4 {vr(lo0+8,4)}, v{vOut}, {srd(sO)}, s{sOo} offen {ost}", tag="ost")
    P.wlg("rd1")
    b = rd
    for r in range(0, 8, 2):
        P.e(f"v_pk_add_f32 {vr(b+r,2)}, {vr(b+r,2)}, {vr(b+8+r,2)}\nv_pk_add_f32 {vr(b+16+r,2)}, {vr(b+16+r,2)}, {vr(b+24+r,2)}")
    for r in range(0, 8, 2): P.e(f"v_pk_add_f32 {vr(b+r,2)}, {vr(b+r,2)}, {vr(b+16+r,2)}")
    P.wlg("ra1")
    for r in range(0, 8, 2): P.e(f"v_pk_fma_f32 {vr(b+r,2)}, {vr(b+r,2)}, {vr(vRr,2)}, {vr(b+40+r,2)} op_sel:[0,1,0] op_sel_hi:[1,1,1]")
    for r in range(4): P.e(f"v_cvt_pk_bf16_f32 v{b+8+r}, v{b+2*r}, v{b+2*r+1}")
    P.e(f"buffer_store_dwordx4 {vr(b+8,4)}, v{vOut}, {srd(sO)}, s{sT1} offen {ost}", tag="ost")
    P.e(f"s_lshl_b32 s3, s2, 2\ns_add_u32 s3, s3, s{sW}\ns_cmp_lg_u32 s3, 128\ns_cbranch_scc1 NOEP")
    P.append(I(f"s_atomic_swap s{sTAG}, s[26:27], 0", kind="cond"))
    P.e("NOEP:")
    if diag:
        stamp(P, "ostiss")
        P.wvm("ALL")
        stamp(P, "end")
        P.e(f"s_waitcnt lgkmcnt(0)\ns_mul_i32 s{sT2}, s{sRB}, 7\ns_add_u32 s{sT2}, s{sT2}, s{sCB}\ns_lshl_b32 s{sT2}, s{sT2}, 2\ns_add_u32 s{sT2}, s{sT2}, s{sW}\ns_lshl_b32 s{sT2}, s{sT2}, 6\ns_add_u32 s{sT2}, s{sT2}, {WS_STAMP}\ns_mov_b64 exec, 1")
        for i, r in enumerate([4] + used_st + [used_st[-1]] * (9 - len(used_st))):
            P.e(f"v_mov_b32 v{t0}, s{r}\nbuffer_store_dword v{t0}, v{vZero}, {srd(sWS)}, s{sT2} offen offset:{4*i}")
    P.e("END:\ns_endpgm")
    H2 = Stream().e("HELPER:\ns_waitcnt vmcnt(0)\ns_endpgm")
    for x in H2: x.kind = "cond"
    ins = resolve_waits(place_m0(flatten(P)))
    ins = pad_hazards(ins) + pad_hazards(list(tail)) + pad_hazards(list(H2))
    body = "\n".join(("" if x.t.endswith(":") else "  ") + x.t for x in ins)
    hdr = open("parallel_sum__ssm_conv_h3__dense_activation_relu__prompt.s.ref").read().split("; Override launch")[0]
    pad = opt.get("pad", 3328)
    return f"""{hdr}; generated by gen/gen2.py (own generator); fused LN + short conv + long conv (Toeplitz MFMA) + MLP
; @launch grid=(256,1,1) block=(256,1,1) lds={LDS_SIZE}
.amdgcn_target "amdgcn-amd-amdhsa--gfx950"
.text
.globl {KN}
.p2align 12
.fill {pad//4}, 4, 0xbf800000
.p2align 8
.type {KN},@function
{KN}:
{body}
CODE_END:
.section .rodata,"a"
.p2align 6
.amdhsa_kernel {KN}
  .amdhsa_next_free_vgpr 512
  .amdhsa_next_free_sgpr 102
  .amdhsa_accum_offset 256
  .amdhsa_group_segment_fixed_size 0
  .amdhsa_kernarg_size 96
  .amdhsa_user_sgpr_count 2
  .amdhsa_user_sgpr_kernarg_segment_ptr 1
  .amdhsa_system_sgpr_workgroup_id_x 1
  .amdhsa_float_denorm_mode_32 3
.end_amdhsa_kernel
"""

if __name__ == "__main__":
    opt = {}
    out = "parallel_sum__ssm_conv_h3__dense_activation_relu__prompt.s"
    for a in sys.argv[1:]:
        k, v = a.split("=")
        if k == "out": out = v
        else: opt[k] = int(v) if v.lstrip("-").isdigit() else v
    open(out, "w").write(gen(opt))
    print("wrote", out)
```

```python
import sys
from asmlib import *

KN = "parallel_sum__ssm_conv_h3__dense_activation_relu__prompt_kernel"
XB = 2048 * 448 * 2
WB = 448 * 1792 * 2
WS_E = 0
MB0, MB3, MB1, MB2 = 0x1000, 0x5000, 0x9000, 0xD000
WS_ST = 0x58000
WS_STAMP = 0x98000
WS_KVT = 0x100000
WS_Y2 = 0x2C0000
WS_H = 0x480000
WS_END = WS_H + 0x700000
SLOT = 32768
CA = 98304
CB = CA + 33280
MISC = 150016
L_EX = MISC
L_EXC = MISC + 1024
L_EXZ = MISC + 2048
L_STT = MISC + 2304
LDS_SIZE = MISC + 2304 + 512
P0K = CA; P0V = P0K + 9 * 1040; P0X = P0V + 8 * 1040
L_AP = 131840
assert L_AP >= CB and L_AP + 16384 <= MISC and L_AP % 256 == 0
LCG_A = 0x9E3779B1; LCG_C = 0x7F4A7C15

def gen(opt):
    diag = opt.get("diag", 0)
    p0pos = opt.get("p0pos", -1)
    V = RegAlloc("v", 1, 112); va = V.alloc
    AR = RegAlloc("v", 112, 256); aa = AR.alloc
    sX, sK, sV, sW1, sW2, sH, sWS, sO = 28, 32, 36, 40, 44, 48, 52, 56
    S = RegAlloc("s", 60, 92)
    sa = lambda n: S.alloc(n)
    sW, sRB, sCB, sR, sHALF, sJ = [sa(n) for n in "W RB CB R HALF J".split()]
    sXo, sWo, sSt, sM0a, sM0b, sW2o, sP0o, sP0m = [sa(n) for n in "Xo Wo St M0a M0b W2o P0o P0m".split()]
    sT0, sT1, sT2 = sa("T0"), sa("T1"), sa("T2")
    sPL = 92; sTAG = 100
    srd = lambda n: f"s[{n}:{n+3}]"
    vr = lambda b, n: f"v[{b}:{b+n-1}]" if n > 1 else f"v{b}"
    ar = lambda b, n: f"a[{b}:{b+n-1}]" if n > 1 else f"a{b}"
    stamp_regs = [6, 8, 12, 16, 18, 20, 22, 24]
    used_st = []
    sel = opt.get("stamps", "g1go,g1done,hst,cv_0,convdone,g2go,g2done,end").split(",")
    smn = 's_memtime' if diag == 2 else 's_memrealtime'
    def stamp(s, name):
        if diag and name in sel:
            r = stamp_regs[len(used_st)]; used_st.append(r)
            s.e(f"{smn} s[{r}:{r+1}]", tag="stamp")
    tail = Stream()
    npoll = [0]
    def poll_issue(s, sOff, tag):
        s.e(f"s_load_dwordx8 s[{sPL}:{sPL+7}], s[26:27], s{sOff} glc", tag=tag)
    def poll_check(s, sOff, tag, n):
        k = npoll[0]; npoll[0] += 1
        chk = (f"s_mov_b32 s{sPL+7}, s{sTAG}\n" if n == 7 else "") + "\n".join(
            f"s_xor_b64 s[{sPL+2*i}:{sPL+2*i+1}], s[{sPL+2*i}:{sPL+2*i+1}], s[{sTAG}:{sTAG+1}]" for i in range(4)) + f"""
s_or_b64 s[{sPL}:{sPL+1}], s[{sPL}:{sPL+1}], s[{sPL+2}:{sPL+3}]
s_or_b64 s[{sPL+4}:{sPL+5}], s[{sPL+4}:{sPL+5}], s[{sPL+6}:{sPL+7}]
s_or_b64 s[{sPL}:{sPL+1}], s[{sPL}:{sPL+1}], s[{sPL+4}:{sPL+5}]"""
        s.wlg(tag)
        s.glue(chk + f"\ns_cbranch_scc1 RETRY{k}\nOK{k}:")
        for t in f"""RETRY{k}:
s_mov_b32 s3, 100000
RL{k}:
s_load_dwordx8 s[{sPL}:{sPL+7}], s[26:27], s{sOff} glc
s_sub_u32 s3, s3, 1
s_cmp_eq_u32 s3, 0
s_waitcnt lgkmcnt(0)
s_cbranch_scc1 OK{k}
{chk}
s_cbranch_scc1 RL{k}
s_branch OK{k}""".split("\n"):
            tail.append(I(t, kind="cond"))
    def signal(s, vmtag, *offs):
        s.wvm(vmtag)
        for o in offs: s.e(f"s_atomic_swap s{sTAG}, s[26:27], s{o}", tag="sig")

    P = Stream()
    t0, t1, t2, t3 = va("t0"), va("t1"), va("t2"), va("t3")
    if diag: P.e(f"{smn} s[92:93]", tag="stamp")
    if opt.get("dead"): P.e("s_memrealtime s[92:93]", tag="stamp")
    P.e(f"""
s_load_dwordx16 s[4:19], s[0:1], 0
s_load_dwordx8 s[20:27], s[0:1], 64""", tag="karg")
    P.e(f"""
v_lshrrev_b32 v{t0}, 6, v0
s_cmp_ge_u32 s2, 32
s_cbranch_scc1 MAIN""")
    Hs = Stream()
    Hs.e(f"""
s_getpc_b64 s[30:31]
PCREF:
v_lshlrev_b32 v1, 7, v0
v_min_u32 v1, CODE_END-PCREF-4, v1
global_load_dword v2, v1, s[30:31]
s_branch HELPER""")
    for x in Hs: x.kind = "cond"
    P += Hs
    vl3, vl7, vl4, vl5, vr_, vlo, vl16, vPair = [va(n) for n in "l3 l7 l4 l5 r lo l16 pair".split()]
    vDX = [va(f"DX{q}") for q in range(4)]; vDW = [va(f"DW{q}") for q in range(4)]
    P.e(f"""
MAIN:
s_cmp_ge_u32 s2, 256
s_cbranch_scc1 END
v_readfirstlane_b32 s{sW}, v{t0}
v_and_b32 v0, 63, v0
s_sub_u32 s3, s2, 32
s_and_b32 s{sT0}, s3, 7
s_lshr_b32 s{sT1}, s3, 3
s_mul_i32 s{sT2}, s{sT1}, 37
s_lshr_b32 s{sT2}, s{sT2}, 8
s_mul_i32 s3, s{sT2}, 7
s_sub_u32 s{sCB}, s{sT1}, s3""")
    if opt.get("map", "B") == "B":
        P.e(f"s_lshr_b32 s{sR}, s{sT0}, 1\ns_lshl_b32 s{sR}, s{sR}, 2\ns_add_u32 s{sR}, s{sR}, s{sT2}\ns_and_b32 s{sHALF}, s{sT0}, 1")
    else:
        P.e(f"s_lshl_b32 s{sR}, s{sT0}, 1\ns_lshr_b32 s3, s{sT2}, 1\ns_add_u32 s{sR}, s{sR}, s3\ns_and_b32 s{sHALF}, s{sT2}, 1")
    P.e(f"""
s_lshl_b32 s{sRB}, s{sR}, 1
s_add_u32 s{sRB}, s{sRB}, s{sHALF}
s_mul_i32 s{sJ}, s{sHALF}, 7
s_add_u32 s{sJ}, s{sJ}, s{sCB}
v_lshrrev_b32 v{vl3}, 3, v0
v_and_b32 v{vl7}, 7, v0
v_lshrrev_b32 v{vl4}, 4, v0
v_mul_u32_u24 v{t3}, 896, v{vl3}
v_xor_b32 v{t1}, v{vl7}, v{vl4}
v_lshl_add_u32 v{vDX[0]}, v{t1}, 4, v{t3}
v_xor_b32 v{t1}, 4, v{t1}
v_lshl_add_u32 v{vDX[1]}, v{t1}, 4, v{t3}
v_add_u32 v{vDX[2]}, {2*6144}, v{vDX[0]}
v_add_u32 v{vDX[3]}, {3*6144}, v{vDX[1]}
v_add_u32 v{vDX[1]}, {6144}, v{vDX[1]}
v_mul_u32_u24 v{t0}, 3584, v{vl4}
v_and_b32 v{t1}, 15, v0
v_lshlrev_b32 v{t2}, 2, v{vl4}
v_xor_b32 v{t1}, v{t1}, v{t2}
v_lshl_add_u32 v{vDW[0]}, v{t1}, 4, v{t0}
v_add_u32 v{vDW[1]}, {4*3584-1024}, v{vDW[0]}
v_add_u32 v{vDW[2]}, {2*(4*3584-1024)}, v{vDW[0]}
v_add_u32 v{vDW[3]}, {3*(4*3584-1024)}, v{vDW[0]}
s_lshl_b32 s{sXo}, s{sR}, 2
s_add_u32 s{sXo}, s{sXo}, s{sW}
s_mul_i32 s{sXo}, s{sXo}, {32*896}
s_mul_i32 s{sWo}, s{sW}, {16*3584}
s_lshl_b32 s{sT1}, s{sJ}, 8
s_add_u32 s{sWo}, s{sWo}, s{sT1}
s_lshl_b32 s{sM0a}, s{sW}, 12
s_lshl_b32 s{sM0b}, s{sW}, 13""")
    rot = opt.get("rot", 1)
    if rot:
        if rot == 1: P.e(f"s_add_u32 s{sSt}, s{sR}, s{sCB}")
        elif rot == 2: P.e(f"s_mov_b32 s{sSt}, s{sT0}")
        elif rot == 3: P.e(f"s_mov_b32 s{sSt}, s{sCB}")
        P.e(f"""
s_mul_i32 s{sT1}, s{sSt}, 37
s_lshr_b32 s{sT1}, s{sT1}, 8
s_mul_i32 s{sT1}, s{sT1}, 7
s_sub_u32 s{sSt}, s{sSt}, s{sT1}
s_lshl_b32 s{sT1}, s{sSt}, 7
s_add_u32 s{sXo}, s{sXo}, s{sT1}
s_mul_i32 s{sT1}, s{sSt}, {64*3584}
s_add_u32 s{sWo}, s{sWo}, s{sT1}""")
    else:
        P.e(f"s_mov_b32 s{sSt}, 0")
    for n, size in ((sX, XB), (sW1, WB), (sK, XB), (sV, XB), (sW2, WB), (sH, XB), (sWS, WS_END), (sO, XB)):
        P.e(f"s_mov_b32 s{n+2}, {size}\ns_mov_b32 s{n+3}, 0x20000")
    vP0, vP1 = va("P0"), va("P1"); vPh = va("Ph"); vTa = va("Ta"); sHal = sa("Hal")
    P.e(f"""
v_lshl_add_u32 v{vP0}, v{vl7}, 4, v{t3}
v_add_u32 v{vP1}, {7168-1040}, v{vP0}
s_lshl_b32 s{sP0o}, s{sRB}, 2
s_add_u32 s{sP0o}, s{sP0o}, s{sW}
s_mul_i32 s{sP0o}, s{sP0o}, {16*896}
s_lshl_b32 s{sT1}, s{sCB}, 7
s_add_u32 s{sP0o}, s{sP0o}, s{sT1}
s_mul_i32 s{sP0m}, s{sW}, 2080
s_cmp_eq_u32 s{sRB}, 0
s_cselect_b32 s{sT1}, 0x40000000, 0
s_cselect_b32 s{sHal}, 0, 7168
s_sub_u32 s{sHal}, s{sP0o}, s{sHal}
v_add_u32 v{vPh}, s{sT1}, v{vP0}
s_lshl_b32 s{sT1}, s{sW}, 3
v_add_u32 v{vPair}, s{sT1}, v{vl3}
s_lshl_b32 s{sT1}, s{sCB}, 5
v_add_lshl_u32 v{vTa}, v{vPair}, s{sT1}, 2
v_lshlrev_b32 v{t2}, 2, v{vTa}
v_lshlrev_b32 v{vl16}, 4, v0""")
    SU = Stream()
    vXA = [[va(f"XA{h}{k}") for k in range(4)] for h in range(2)]
    vXB = [[va(f"XB{h}{k}") for k in range(4)] for h in range(2)]
    vWA = [[va(f"WA{h}{k}") for k in range(2)] for h in range(2)]
    vSel = va("sel", 4, 4); vZero = va("zero", 4, 4)
    SU.e(f"""
v_lshrrev_b32 v{vl5}, 5, v0
v_and_b32 v{t0}, 31, v0
v_lshl_add_u32 v{t0}, v{t0}, 7, s{sM0a}
v_bfe_u32 v{t1}, v0, 1, 3
v_xor_b32 v{t1}, v{t1}, v{vl5}""")
    for k in range(4):
        SU.e(f"""
v_xor_b32 v{t3}, {2*k}, v{t1}
v_lshl_add_u32 v{vXA[0][k]}, v{t3}, 4, v{t0}
v_xor_b32 v{vXB[0][k]}, 0x1000, v{vXA[0][k]}
v_add_u32 v{vXA[1][k]}, 0x10000, v{vXA[0][k]}
v_add_u32 v{vXB[1][k]}, 0x10000, v{vXB[0][k]}""")
    SU.e(f"""
v_bfe_u32 v{vr_}, v0, 2, 2
v_and_b32 v{t0}, 3, v0
v_lshlrev_b32 v{vlo}, 3, v{t0}
v_and_b32 v{t0}, 16, v0
v_lshl_add_u32 v{vlo}, v{t0}, 1, v{vlo}
v_lshl_add_u32 v{t0}, v{vl5}, 3, v{vr_}
v_lshl_add_u32 v{t0}, v{t0}, 8, v{vlo}
v_add_u32 v{t0}, 16384, v{t0}
s_and_b32 s{sT0}, s{sW}, 1
s_lshl_b32 s{sT0}, s{sT0}, 1
s_lshr_b32 s{sT1}, s{sW}, 1
s_add_u32 s{sT0}, s{sT0}, s{sT1}
v_xor_b32 v{t1}, s{sT0}, v{vr_}
v_lshl_add_u32 v{vWA[0][0]}, v{t1}, 6, v{t0}
v_xor_b32 v{vWA[0][1]}, 64, v{vWA[0][0]}
v_add_u32 v{vWA[1][0]}, 0x10000, v{vWA[0][0]}
v_add_u32 v{vWA[1][1]}, 0x10000, v{vWA[0][1]}
v_lshrrev_b32 v{t0}, 2, v0
v_xor_b32 v{t0}, v{t0}, v{vl4}
v_and_b32 v{t0}, 1, v{t0}
v_cmp_eq_u32 vcc, 0, v{t0}
v_mov_b32 v{t1}, 0x3f803f80
v_mov_b32 v{vZero}, 0
v_cndmask_b32 v{vSel}, 0, v{t1}, vcc
v_mov_b32 v{vZero+1}, 0
v_mov_b32 v{vZero+2}, 0
v_mov_b32 v{vZero+3}, 0
v_mov_b32 v{vSel+1}, v{vSel}
v_mov_b32 v{vSel+2}, v{vSel}
v_mov_b32 v{vSel+3}, v{vSel}""")
    vEW = va("EW"); vER = va("ERx"); vEC = va("ECx")
    SU.e(f"""
v_and_b32 v{t0}, 31, v0
v_lshlrev_b32 v{t0}, 3, v{t0}
s_lshl_b32 s{sT0}, s{sT0}, 8
s_add_u32 s{sT0}, s{sT0}, {L_EXC}
v_add_u32 v{vEC}, s{sT0}, v{t0}
s_lshl_b32 s{sT1}, s{sW}, 8
s_add_u32 s{sT1}, s{sT1}, {L_EX}
v_add_u32 v{vER}, s{sT1}, v{t0}
v_cmp_gt_u32 vcc, 32, v0
v_mov_b32 v{t1}, {L_EXZ}
v_cndmask_b32 v{vEW}, v{vEC}, v{vER}, vcc""")
    SU.e(f"ds_write_b64 v{t1}, {vr(vZero,2)}", tag="exz")
    vK0, vK1, vS0, vKV = va("K0"), va("K1"), va("S0"), va("KV")
    sKVo, sSTo, sF0w, sF3w, sF0r, sF3r, sF1w, sF1r = [sa(n) for n in "KVo STo F0w F3w F0r F3r F1w F1r".split()]
    SU.e(f"""
v_mul_u32_u24 v{t0}, 1040, v{vl7}
v_lshl_add_u32 v{vK0}, v{vPair}, 2, v{t0}
v_add_u32 v{vK0}, {P0K}, v{vK0}
v_add_u32 v{vK1}, 1040, v{vK0}
v_mul_u32_u24 v{t0}, 1040, v{vl5}
v_and_b32 v{t1}, 31, v0
v_lshl_add_u32 v{vS0}, v{t1}, 5, v{t0}
s_add_u32 s{sT0}, s{sP0m}, {P0X}
v_add_u32 v{vS0}, s{sT0}, v{vS0}
v_sub_u32 v{t0}, 7, v{vl7}
v_lshlrev_b32 v{t0}, 4, v{t0}
v_lshl_add_u32 v{vKV}, v{vPair}, 13, v{t0}
s_lshl_b32 s{sKVo}, s{sCB}, 18
s_lshl_b32 s{sT0}, s{sRB}, 7
s_sub_u32 s{sKVo}, s{sKVo}, s{sT0}
s_add_u32 s{sKVo}, s{sKVo}, {WS_KVT + 248*16}
s_mul_i32 s{sSTo}, s{sRB}, 7
s_add_u32 s{sSTo}, s{sSTo}, s{sCB}
s_lshl_b32 s{sSTo}, s{sSTo}, 2
s_add_u32 s{sSTo}, s{sSTo}, s{sW}
s_lshl_b32 s{sSTo}, s{sSTo}, 8
s_add_u32 s{sSTo}, s{sSTo}, {WS_ST}
s_lshr_b32 s{sT0}, s{sRB}, 3
s_lshl_b32 s{sT1}, s{sCB}, 2
s_add_u32 s{sF0w}, s{sT1}, s{sT0}
s_lshl_b32 s{sF0w}, s{sF0w}, 2
s_add_u32 s{sF0w}, s{sF0w}, s{sW}
s_lshl_b32 s{sF0w}, s{sF0w}, 5
s_and_b32 s{sT2}, s{sRB}, 7
s_add_u32 s{sF0w}, s{sF0w}, s{sT2}
s_lshl_b32 s{sF0w}, s{sF0w}, 2
s_add_u32 s{sF0w}, s{sF0w}, {MB0}
s_sub_u32 s{sT2}, 3, s{sW}
s_add_u32 s{sF0r}, s{sT1}, s{sT2}
s_lshl_b32 s{sF0r}, s{sF0r}, 2
s_add_u32 s{sF0r}, s{sF0r}, s{sT0}
s_lshl_b32 s{sF0r}, s{sF0r}, 7
s_add_u32 s{sF0r}, s{sF0r}, {MB0}
s_lshl_b32 s{sF3r}, s{sRB}, 2
s_add_u32 s{sF3r}, s{sF3r}, s{sW}
s_lshl_b32 s{sF3r}, s{sF3r}, 7
s_add_u32 s{sF1r}, s{sF3r}, {MB1}
s_add_u32 s{sF3r}, s{sF3r}, {MB3}
s_lshl_b32 s{sT2}, s{sCB}, 2
s_add_u32 s{sF3w}, s{sF3r}, s{sT2}""")
    sHst, sHo = sa("Hst"), sa("Ho")
    vHS = va("HS")
    SU.e(f"""
s_lshr_b32 s{sT0}, s{sW}, 1
s_lshl_b32 s{sT1}, s{sR}, 1
s_add_u32 s{sT1}, s{sT1}, s{sT0}
s_lshl_b32 s{sT2}, s{sJ}, 1
s_and_b32 s3, s{sW}, 1
s_add_u32 s{sT2}, s{sT2}, s3
s_mul_i32 s{sHst}, s{sT1}, 28
s_add_u32 s{sHst}, s{sHst}, s{sT2}
s_lshl_b32 s{sHst}, s{sHst}, 13
s_add_u32 s{sHst}, s{sHst}, {WS_H}
s_lshl_b32 s3, s3, 12
s_lshl_b32 s{sT0}, s{sT0}, 11
s_add_u32 s3, s3, s{sT0}
v_add_u32 v{vHS}, s3, v{vl16}
s_mul_i32 s3, s{sT2}, 37
s_lshr_b32 s3, s3, 8
s_lshl_b32 s{sF1w}, s{sT1}, 2
s_add_u32 s{sF1w}, s{sF1w}, s3
s_lshl_b32 s{sF1w}, s{sF1w}, 5
s_mul_i32 s3, s3, 7
s_sub_u32 s3, s{sT2}, s3
s_add_u32 s{sF1w}, s{sF1w}, s3
s_lshl_b32 s{sF1w}, s{sF1w}, 2
s_add_u32 s{sF1w}, s{sF1w}, {MB1}
s_mul_i32 s{sHo}, s{sRB}, 28
s_mul_i32 s{sT0}, s{sW}, 7
s_add_u32 s{sHo}, s{sHo}, s{sT0}
s_lshl_b32 s{sHo}, s{sHo}, 13
s_add_u32 s{sHo}, s{sHo}, {WS_H}""")
    vD2 = [va(f"D2{q}") for q in range(4)]; vW2A = [[va(f"W2A{h}{d}") for d in range(2)] for h in range(2)]
    sCHo = sa("CHo")
    SU.e(f"""
v_and_b32 v{t1}, 16, v0
v_lshlrev_b32 v{t1}, 2, v{t1}
v_xor_b32 v{vD2[0]}, v{t1}, v{vP0}
v_add_u32 v{vD2[1]}, 6144, v{vD2[0]}
v_add_u32 v{vD2[2]}, {2*6144}, v{vD2[0]}
v_add_u32 v{vD2[3]}, {3*6144}, v{vD2[0]}
s_mul_i32 s{sW2o}, s{sW}, {448*896}
s_lshl_b32 s{sT2}, s{sCB}, 7
s_add_u32 s{sW2o}, s{sW2o}, s{sT2}
v_lshl_add_u32 v{t0}, v{vl5}, 2, v{vr_}
v_lshl_add_u32 v{t0}, v{t0}, 7, v{vlo}
v_add_u32 v{t0}, s{sM0b}, v{t0}
v_lshrrev_b32 v{t1}, 1, v{vr_}
v_lshl_add_u32 v{vW2A[0][0]}, v{t1}, 6, v{t0}
v_xor_b32 v{vW2A[0][1]}, 64, v{vW2A[0][0]}
v_add_u32 v{vW2A[1][0]}, 0x10000, v{vW2A[0][0]}
v_add_u32 v{vW2A[1][1]}, 0x10000, v{vW2A[0][1]}
s_lshl_b32 s{sCHo}, s{sCB}, 5
s_add_u32 s{sCHo}, s{sCHo}, s{sRB}
s_lshl_b32 s{sCHo}, s{sCHo}, 13""")

    def g1_dma(i):
        s = Stream(); sl = i % 3
        for q in range(4): s.dma(f"buffer_load_dwordx4 v{vDX[q]}, {srd(sX)}, s{sXo} offen offset:{q*1024} lds", (sM0a, sl*SLOT), f"g1d{i}")
        for q in range(4): s.dma(f"buffer_load_dwordx4 v{vDW[q]}, {srd(sW1)}, s{sWo} offen offset:{q*1024} lds", (sM0a, sl*SLOT+16384), f"g1d{i}")
        if i < 6:
            s.glue(f"""s_add_u32 s{sSt}, s{sSt}, 1
s_cmp_eq_u32 s{sSt}, 7
s_cselect_b32 s3, {(128-896) & 0xffffffff}, 128
s_add_u32 s{sXo}, s{sXo}, s3
s_cmp_eq_u32 s{sSt}, 7
s_cselect_b32 s3, {(64*3584-448*3584) & 0xffffffff}, s{sWinc}
s_add_u32 s{sWo}, s{sWo}, s3""".replace(", 128\n", f", s{sXinc}\n"))
        return s
    sXinc, sWinc = sa("Xinc"), sa("Winc")
    P.e(f"s_movk_i32 s{sXinc}, 128\ns_mov_b32 s{sWinc}, {64*3584}")
    vTap = va("tap", 4, 4); vDd = va("Dd")
    def p0_loads():
        s = Stream()
        s.glue(f"s_cmp_lg_u32 s{sW}, 0\ns_cbranch_scc1 NOHALO\ns_mov_b32 m0, {P0K}")
        s[-1].append(I(f"buffer_load_dwordx4 v{vPh}, {srd(sK)}, s{sHal} offen lds", kind="cond"))
        s[-1].append(I("NOHALO:"))
        for sr, base in ((sK, P0K + 1040), (sV, P0V), (sX, P0X)):
            s.dma(f"buffer_load_dwordx4 v{vP0}, {srd(sr)}, s{sP0o} offen lds", (sP0m, base), "p0")
            s.dma(f"buffer_load_dwordx4 v{vP1}, {srd(sr)}, s{sP0o} offen offset:1040 lds", (sP0m, base), "p0")
        return s
    nsu = opt.get("su_early", 60)
    P += SU[:nsu]; SU = SU[nsu:]
    P.wlg("karg")
    P.e(f"s_mov_b64 s[{sX}:{sX+1}], s[4:5]\ns_mov_b64 s[{sW1}:{sW1+1}], s[18:19]\ns_mov_b64 s[{sK}:{sK+1}], s[6:7]\ns_mov_b64 s[{sV}:{sV+1}], s[8:9]")
    if opt.get("probe"):
        base = {"bx": "s[16:17]", "ws": "s[26:27]", "w2": "s[20:21]", "out": "s[22:23]"}[opt["probe"]]
        P.e(f"s_sub_u32 s3, s2, 32\ns_lshl_b32 s3, s3, 2\ns_add_u32 s3, s3, s{sW}\ns_mul_i32 s3, s3, 1792\nv_mov_b32 v{t0}, s3")
        if opt["probe"] == "ws": P.e(f"v_add_u32 v{t0}, 0x1000000, v{t0}")
        for i in range(14):
            P.e(f"global_load_dword v{t1}, v{t0}, {base} offset:{i*128}", tag="probe"); P.wvm("probe")
            if opt.get("pstride"): P.e(f"v_add_u32 v{t0}, {opt['pstride']}, v{t0}")
    if opt.get("delay") == "sleep": P.e("s_sleep 127")
    if opt.get("delay") == "mfma":
        P.e("s_mov_b32 s3, 32\nDL:")
        for i in range(8): P.e("v_mfma_f32_32x32x16_bf16 v[128:143], v[4:7], v[8:11], v[128:143]")
        P.e("s_sub_u32 s3, s3, 1\ns_cmp_lg_u32 s3, 0\ns_cbranch_scc1 DL")
    small = Stream().e(f"global_load_dwordx4 {vr(vTap,4)}, v{t2}, s[10:11]\nglobal_load_dword v{vDd}, v{vTa}, s[14:15]", tag="p0")
    P.e(f"s_load_dword s{sTAG}, s[26:27], 0", tag="etag")
    if p0pos < 0:
        P += p0_loads(); P += small; P += g1_dma(0)
    else:
        P += g1_dma(0); P += small
    P.e(f"s_mov_b64 s[{sW2}:{sW2+1}], s[20:21]\ns_mov_b64 s[{sH}:{sH+1}], s[12:13]\ns_mov_b64 s[{sWS}:{sWS+1}], s[26:27]\ns_mov_b64 s[{sO}:{sO+1}], s[22:23]")
    if diag or opt.get("dead"): P.e("s_mov_b32 s4, s92")
    stamp(P, "iss0")
    P += SU
    P.wlg("etag")
    P.e(f"s_mul_i32 s{sTAG}, s{sTAG}, {LCG_A}\ns_add_u32 s{sTAG}, s{sTAG}, {LCG_C}\ns_mov_b32 s{sTAG+1}, s{sTAG}")

    vXP = va("XP", 8); vKVf = va("KVf", 16); vDf = va("Df", 2)
    acc = aa("acc", 64, 4)
    NB = 4
    fb = 160
    tmp0 = aa("fb", 64, 4)
    sacc = aa("sacc", 8, 4); hp = aa("hp", 8, 4)
    def phase0(tmp):
        kf = tmp; kraw = tmp + 22; vraw = tmp + 34; tf = tmp + 42; vf = tmp + 50; sx = tmp + 52; pk = tmp + 24
        acc0 = vKVf
        Z = Stream()
        Z.e(f"ds_read2_b32 {vr(kraw,2)}, v{vK0} offset0:160 offset1:192\nds_read_b32 v{kraw+2}, v{vK0} offset:896", tag="k")
        for i in range(4): Z.e(f"ds_read2_b32 {vr(kraw+4+2*i,2)}, v{vK1} offset0:{64*i} offset1:{64*i+32}", tag="k")
        Z.e(f"v_add_u32 v{vK0}, {P0V-P0K}, v{vK0}\nv_add_u32 v{vK1}, {P0X-P0K-1040}, v{vK1}")
        for i in range(4): Z.e(f"ds_read2_b32 {vr(vraw+2*i,2)}, v{vK0} offset0:{64*i} offset1:{64*i+32}", tag="v")
        Z.e(f"ds_read_b128 {vr(sx,4)}, v{vS0}\nds_read_b128 {vr(sx+4,4)}, v{vS0} offset:16", tag="sx")
        for c in range(2):
            for h in range(2):
                Z.e(f"v_lshlrev_b32 v{tf+2*(2*h)+c}, 16, v{vTap+2*c+h}\nv_and_b32 v{tf+2*(2*h+1)+c}, 0xffff0000, v{vTap+2*c+h}")
        Z.e(f"v_lshlrev_b32 v{vDf}, 16, v{vDd}\nv_and_b32 v{vDf+1}, 0xffff0000, v{vDd}")
        Z.wlg("k")
        for i in range(4): Z.e(f"ds_read2_b32 {vr(vXP+2*i,2)}, v{vK1} offset0:{64*i} offset1:{64*i+32}", tag="xp")
        kreg = [kraw, kraw+1, kraw+2] + [kraw+4+i for i in range(8)]
        for i in range(11):
            Z.e(f"v_lshlrev_b32 v{kf+2*i}, 16, v{kreg[i]}\nv_and_b32 v{kf+2*i+1}, 0xffff0000, v{kreg[i]}")
        for i in range(8): Z.e(f"v_pk_mul_f32 {vr(acc0+2*i,2)}, {vr(kf+2*i,2)}, {vr(tf+6,2)}")
        for t in (2, 1, 0):
            for i in range(8): Z.e(f"v_pk_fma_f32 {vr(acc0+2*i,2)}, {vr(kf+2*(i+3-t),2)}, {vr(tf+2*t,2)}, {vr(acc0+2*i,2)}")
        Z.wlg("v")
        for i in range(8):
            Z.e(f"v_lshlrev_b32 v{kf+2*i}, 16, v{vraw+i}\nv_and_b32 v{kf+2*i+1}, 0xffff0000, v{vraw+i}")
        for i in range(8): Z.e(f"v_pk_mul_f32 {vr(acc0+2*i,2)}, {vr(acc0+2*i,2)}, {vr(kf+2*i,2)}")
        for c in range(2):
            for d in range(4): Z.e(f"v_cvt_pk_bf16_f32 v{pk+4*c+d}, v{acc0+2*(7-2*d)+c}, v{acc0+2*(6-2*d)+c}")
        Z.e(f"v_add_u32 v{vK0}, 4096, v{vKV}")
        Z.e(f"""
buffer_store_dwordx4 {vr(pk,4)}, v{vKV}, {srd(sWS)}, s{sKVo} offen sc1
buffer_store_dwordx4 {vr(pk+4,4)}, v{vK0}, {srd(sWS)}, s{sKVo} offen sc1""", tag="p0st")
        Z.wlg("sx")
        Z.e(f"v_mov_b32 v{kf}, 0x3f803f80\nv_mov_b32 v{vf}, 0\nv_mov_b32 v{vf+1}, 0")
        for i in range(8):
            Z.e(f"v_dot2_f32_bf16 v{vf}, v{sx+i}, v{kf}, v{vf}\nv_dot2_f32_bf16 v{vf+1}, v{sx+i}, v{sx+i}, v{vf+1}")
        Z.e(f"v_and_b32 v{kf+1}, 1, v0\nv_cmp_eq_u32 vcc, 1, v{kf+1}\nv_lshlrev_b32 v{kf+1}, 2, v0")
        for perm in ("[1,0,3,2]", "[2,3,0,1]"):
            Z.e(f"""v_add_f32_dpp v{vf}, v{vf}, v{vf} quad_perm:{perm} row_mask:0xf bank_mask:0xf
v_add_f32_dpp v{vf+1}, v{vf+1}, v{vf+1} quad_perm:{perm} row_mask:0xf bank_mask:0xf""")
        Z.e(f"v_cndmask_b32 v{vf}, v{vf}, v{vf+1}, vcc")
        Z.e(f"buffer_store_dword v{vf}, v{kf+1}, {srd(sWS)}, s{sSTo} offen sc1", tag="p0st")
        return Z
    def sprinkle(Z, items):
        out = Stream(); items = list(items)
        step = max(1, len(Z) // (len(items) + 1)); k = 0
        for i, x in enumerate(Z):
            out.append(x)
            if i % step == step - 1 and k < len(items): out.append(items[k]); k += 1
        out += items[k:]
        return out

    def g1_reads(kap):
        i, ks = divmod(kap, 4)
        s = Stream(); sl = i % 3; h = 1 if sl == 2 else 0; base = sl * SLOT if sl < 2 else 0
        b = fb + 16 * (kap % NB); tg = f"fr{kap}"
        s.e(f"ds_read_b128 {ar(b,4)}, v{vXA[h][ks]} offset:{base}", tag=tg)
        for hh in range(2): s.e(f"ds_read_b64_tr_b16 {ar(b+8+2*hh,2)}, v{vWA[h][0]} offset:{base+ks*4096+hh*1024}", tag=tg)
        s.e(f"ds_read_b128 {ar(b+4,4)}, v{vXB[h][ks]} offset:{base}", tag=tg)
        for hh in range(2): s.e(f"ds_read_b64_tr_b16 {ar(b+12+2*hh,2)}, v{vWA[h][1]} offset:{base+ks*4096+hh*1024}", tag=tg)
        return s
    TILES = ((0, 0), (0, 1), (1, 0), (1, 1))
    def mf(kap, f, st):
        b = fb + 16 * (kap % NB); a = acc + (2*f+st)*16
        return f"v_mfma_f32_32x32x16_bf16 {vr(a,16)}, {ar(b+8+4*f,4)}, {ar(b+4*st,4)}, {'0' if kap == 0 else vr(a,16)}"
    def ms(kap, which):
        b = fb + 16 * (kap % NB); a = sacc + 4 * which
        return f"v_mfma_f32_16x16x32_bf16 {vr(a,4)}, {vr(vSel,4)}, {ar(b+8*which,4)}, {'0' if kap == 0 else vr(a,4)}"
    W2B = {0: SLOT, 1: SLOT + 4096, 2: 2*SLOT, 3: 2*SLOT + 4096, 4: 0, 5: 4096}
    W2MAP = [0, 1, 2, 3, 0, 1, 4, 5, 2, 3, 0, 1, 4, 5]
    W2PREV = {4: 0, 5: 1, 8: 2, 9: 3, 10: 4, 11: 5, 12: 6, 13: 7}
    def w2_dma(g):
        s = Stream(); b = W2B[W2MAP[g]]
        if g in W2PREV: s.wlg(f"w2r{W2PREV[g]}")
        for q in range(4): s.dma(f"buffer_load_dwordx4 v{vD2[q]}, {srd(sW2)}, s{sW2o} offen offset:{q*1024} lds", (sM0b, b), f"w2d{g}")
        s.e(f"s_add_u32 s{sW2o}, s{sW2o}, {32*896}")
        return s
    def w2_read(g):
        s = Stream(); b = W2B[W2MAP[g]]; h = 1 if b >= 65536 else 0; b -= h * 65536
        s.wvm(f"w2d{g}")
        for kbl in range(2):
            for dt in range(2):
                a = ((2*g + kbl) * 2 + dt) * 4
                for hh in range(2):
                    s.e(f"ds_read_b64_tr_b16 {ar(a+2*hh,2)}, v{vW2A[h][dt]} offset:{b + kbl*2048 + hh*1024}", tag=f"w2r{g}")
        return s
    vSS = va("SS", 8, 4); vCAw = vP1; vCA, vCB = vPh, vTa
    def convA_load():
        s = Stream()
        s.glue(f"s_lshl_b32 s3, s{sW}, 11\ns_add_u32 s3, s3, s{sCHo}\nbuffer_load_dwordx4 {vr(vSS,4)}, v{vl16}, {srd(sH)}, s3 offen\nbuffer_load_dwordx4 {vr(vSS+4,4)}, v{vl16}, {srd(sH)}, s3 offen offset:1024", tag="ss")
        return s
    u0, u1 = vS0, vK1
    def convA_write():
        s = Stream()
        s.glue(f"""
s_lshr_b32 s3, s{sW}, 1
s_mul_i32 s3, s3, {16640 - 4096}
s_add_u32 s3, s3, {CA}
v_add_u32 v{vCAw}, s3, v{vl16}
s_lshl_b32 s3, s{sW}, 11
v_add_u32 v{vCAw}, s3, v{vCAw}""")
        s.glue(f"""
s_lshr_b32 s3, s{sW}, 1
s_mul_i32 s3, s3, 16640
s_add_u32 s3, s3, {CA}
v_and_b32 v{u0}, 15, v0
v_add_u32 v{u1}, v{u0}, v{vl4}
v_cmp_gt_u32 vcc, 15, v{u1}
v_mul_u32_u24 v{u1}, 1040, v{vl4}
v_add_lshl_u32 v{u0}, v{u0}, v{u1}, 2
v_add_u32 v{u0}, s3, v{u0}
v_mov_b32 v{u1}, {L_EXZ+8}
v_cndmask_b32 v{u0}, v{u1}, v{u0}, vcc""")
        s.e(f"ds_write_b32 v{u0}, v{vZero}", tag="caw")
        s.glue(f"""
v_min_u32 v{u1}, 29, v0
s_mul_i32 s3, s{sW}, 4576
s_add_u32 s3, s3, {CB + 4096}
v_lshl_add_u32 v{u1}, v{u1}, 4, s3""")
        s.e(f"ds_write_b128 v{u1}, {vr(vZero,4)}", tag="caw")
        s.wvm("ss")
        for q in range(2):
            d = vSS + 4*q
            s.e(f"ds_write_b128 v{vCAw}, {vr(d,4)} offset:{3*4160 + 48 + q*1024}", tag="caw")
            s.e(f"ds_write_b64 v{vCAw}, {vr(d,2)} offset:{4160 + 56 + q*1024}\nds_write_b64 v{vCAw}, {vr(d+2,2)} offset:{4160 + 64 + q*1024}", tag="caw")
            for m0 in (0, 2):
                for k in range(4): s.e(f"ds_write_b32 v{vCAw}, v{d+k} offset:{m0*4160 + (15-m0+k)*4 + q*1024}", tag="caw")
        s.glue(f"""
v_and_b32 v{u0}, 3, v0
v_mul_u32_u24 v{u0}, 4160, v{u0}
v_add_u32 v{u1}, v{vr_}, v{vl4}
v_lshl_add_u32 v{u0}, v{u1}, 4, v{u0}
s_lshr_b32 s3, s{sW}, 1
s_mul_i32 s3, s3, {16640 - 512}
s_add_u32 s3, s3, {CA}
v_add_u32 v{vCA}, s3, v{u0}
s_lshl_b32 s3, s{sW}, 8
v_add_u32 v{vCA}, s3, v{vCA}""")
        s.glue(f"""
v_and_b32 v{u0}, 1, v0
v_mul_u32_u24 v{u0}, 4576, v{u0}
v_bfe_u32 v{u1}, v0, 1, 3
v_lshlrev_b32 v{u1}, 2, v{u1}
v_sub_u32 v{u1}, v{vl4}, v{u1}
v_lshl_add_u32 v{u0}, v{u1}, 4, v{u0}
s_lshr_b32 s3, s{sW}, 1
s_mul_i32 s3, s3, {9152 - 512}
s_add_u32 s3, s3, {CB + 28*16}
v_add_u32 v{vCB}, s3, v{u0}
s_lshl_b32 s3, s{sW}, 8
v_add_u32 v{vCB}, s3, v{vCB}""")
        return s
    vU = vSS; vUn = vTap
    def u_loads():
        s = Stream()
        s.wlg("caw")
        s.glue(f"""
s_cmp_eq_u32 s{sW}, 3
s_cselect_b32 s3, 0x40000000, 0
v_mov_b32 v{u0}, s3
s_lshl_b32 s3, s{sW}, 10
s_add_u32 s3, s3, s{sCHo}
s_add_u32 s3, s3, {WS_KVT}
buffer_load_dwordx4 {vr(vU,4)}, v{vl16}, {srd(sWS)}, s3 offen sc1
buffer_load_dword v{vUn}, v{u0}, {srd(sWS)}, s3 offen offset:1024 sc1
s_add_u32 s3, s3, 4096
buffer_load_dwordx4 {vr(vU+4,4)}, v{vl16}, {srd(sWS)}, s3 offen sc1
buffer_load_dword v{vUn+1}, v{u0}, {srd(sWS)}, s3 offen offset:1024 sc1""", tag="u")
        return s

    SC = Sched()
    if p0pos < 0:
        P.wvm("p0"); P.e("s_barrier")
        stamp(P, "p0go")
        P += sprinkle(phase0(tmp0), list(g1_dma(1)) + list(g1_dma(2)))
        P.wlg("ALL")
        stamp(P, "p0done")
        sig_step = opt.get("sig0", 2)
    else:
        P += p0_loads(); P += g1_dma(1)
        SC.add(g1_dma(2), 0, "g1")
        sig_step = opt.get("sig0", 4 * p0pos + 6)
    sg = Stream(); signal(sg, "p0st", sF0w, sF3w)
    P.wvm("g1d0"); P.e("s_barrier")
    stamp(P, "g1go")
    P += g1_reads(0); P += g1_reads(1)
    ca_step = max(6, 4 * p0pos + 7)
    SC.add(convA_load(), ca_step - 4, "cal")
    SC.add(convA_write(), ca_step, "caw", after="cal")
    ISS, STR = opt.get("iss", 56), opt.get("str", 176)
    for kap in range(24):
        i, ks = divmod(kap, 4)
        if ks == 2:
            if i == 5:
                P += SC.flush("caw")
                poll_check(P, sF0r, "poll0", 8)
            P.wlg("LDS"); P.wvm(f"g1d{i+1}")
            if i == p0pos: P.wvm("p0")
            P.e("s_barrier")
            stamp(P, f"g1b_{i}")
            if i == p0pos:
                P += phase0(tmp0)
            if i + 3 <= 6: SC.chains.insert(0, {"q": list(g1_dma(i + 3)), "e": 0, "name": "g1", "after": None})
            if i == 4:
                poll_issue(P, sF0r, "poll0")
                SC.add(list(w2_dma(0)) + list(w2_dma(1)), 0, "w2")
            if i == 5:
                SC.extend("w2", list(u_loads()) + list(w2_dma(2)) + list(w2_read(0)) + list(w2_dma(3)) + list(w2_read(1)) + list(w2_dma(4)) + list(w2_dma(5)))
        if kap == sig_step: P += sg
        P.wlg(f"fr{kap}")
        M = Stream()
        for (f, st) in TILES:
            M.e(mf(kap, f, st))
            if (f, st) == (0, 0): M.e(ms(kap, 0))
            if (f, st) == (1, 0): M.e(ms(kap, 1))
        side = SC.take(kap, ISS, STR)
        if ks == 1 and i + 2 <= 6: side += SC.flush("g1")
        P += merge(M, (g1_reads(kap + 2), 0, 6), side)
    P.wlg("fr24")
    M = Stream()
    for (f, st) in TILES:
        M.e(mf(24, f, st))
        if (f, st) == (0, 0): M.e(ms(24, 0))
        if (f, st) == (1, 0): M.e(ms(24, 1))
    P += merge(M, (list(g1_reads(26)) + list(g1_reads(27)), 0, 5), SC.take(24, 24, STR))
    P.wlg("fr25"); P.e(ms(25, 0) + "\n" + ms(25, 1))
    P.wlg("fr26"); P.e(ms(26, 0) + "\n" + ms(26, 1))
    P.wlg("fr27"); P.e(ms(27, 0) + "\n" + ms(27, 1))
    ex = fb + 16 * (24 % NB)
    X = Stream()
    for r in (2, 3, 6, 7, 10, 11, 14, 15): X.e(f"v_accvgpr_write_b32 a{ex+r}, 0")
    X.e(f"""
v_mul_f32 v{t0}, {-1.0/448!r}, v{sacc}
v_and_b32 v{t2}, 0xffff0000, v{sacc+4}
v_cvt_pk_bf16_f32 v{t0}, v{t0}, v{t0}
v_sub_f32 v{t3}, v{sacc+4}, v{t2}
v_and_b32 v{t1}, 0xffff, v{t0}
v_and_b32 v{sacc}, 0xffff0000, v{t3}
v_sub_f32 v{t3}, v{t3}, v{sacc}
v_lshrrev_b32 v{t2}, 16, v{t2}
v_cmp_gt_u32 vcc, 32, v0
v_or_b32 v{t2}, v{t2}, v{sacc}
v_lshrrev_b32 v{t3}, 16, v{t3}
v_cndmask_b32 v{sacc+2}, v{t2}, v{t0}, vcc
v_cndmask_b32 v{sacc+3}, v{t3}, v{t1}, vcc""")
    X.e(f"ds_write_b64 v{vEW}, {vr(sacc+2,2)}", tag="exw")
    X.e(f"""
v_mov_b32 v{t1}, {L_EXZ}
v_xor_b32 v{t0}, 256, v{vER}
v_cndmask_b32 v{vER}, v{t1}, v{vER}, vcc
v_cndmask_b32 v{t0}, v{t1}, v{t0}, vcc
v_xor_b32 v{t1}, 256, v{vEC}""")
    M = Stream()
    for (f, st) in TILES: M.e(mf(25, f, st))
    P += merge(M, X)
    P.wlg("LDS"); P.e("s_barrier")
    P.e(f"""
ds_read_b64 {ar(ex,2)}, v{vER}
ds_read_b64 {ar(ex+8,2)}, v{vEC}
ds_read_b64 {ar(ex+4,2)}, v{t0}
ds_read_b64 {ar(ex+12,2)}, v{t1}""", tag="exr")
    SC.extend("w2", list(w2_dma(6)) + list(w2_dma(7)))
    hx = {(0, 0): 0, (0, 1): 0x1000, (1, 0): 0x800, (1, 1): 0x1800}
    def epi(f, st):
        s = Stream(); a = acc + (2*f+st)*16
        if hx[(f, st)]: s.e(f"v_xor_b32 v{t2}, {hx[(f,st)]}, v{vHS}")
        ad = t2 if hx[(f, st)] else vHS
        for e in range(2):
            o = hp + 4 * e
            for r in range(4): s.e(f"v_cvt_pk_bf16_f32 v{o+r}, v{a+8*e+2*r}, v{a+8*e+2*r+1}")
            for r in range(4): s.e(f"v_pk_max_i16 v{o+r}, v{o+r}, 0")
            s.e(f"buffer_store_dwordx4 {vr(o,4)}, v{ad}, {srd(sWS)}, s{sHst} offen offset:{e*1024} sc1", tag="hst")
        return s
    T = TILES
    M = Stream()
    M.e(mf(26, *T[0]) + "\n" + mf(27, *T[0]) + "\n" + mf(26, *T[1]))
    M.wlg("exr")
    M.e(mf(24, *T[0]) + "\n" + mf(27, *T[1]) + "\n" + mf(24, *T[1]))
    for t in (2, 3): M.e(mf(26, *T[t]) + "\n" + mf(27, *T[t]) + "\n" + mf(24, *T[t]))
    pre = SC.flush()
    P += merge(M, (pre, 0, 5), (epi(*T[0]), 5, 8), (epi(*T[1]), 8, 10), (epi(*T[2]), 10, 12))
    stamp(P, "g1done")
    us = tmp0
    P.wvm("u")
    for c in range(2):
        P.e(f"v_mov_b32_dpp v{vUn+c}, v{vU+4*c} wave_shl:1 row_mask:0xf bank_mask:0xf")
    P.e(f"s_lshl_b32 s3, s{sW}, 10\ns_add_u32 s3, s3, {CB}\nv_add_u32 v{u0}, s3, v{vl16}")
    P.e(f"ds_write_b128 v{u0}, {vr(vU,4)} offset:4576\nds_write_b128 v{u0}, {vr(vU+4,4)} offset:{9152+4576}", tag="uw")
    for c in range(2):
        for d in range(3): P.e(f"v_alignbyte_b32 v{us+4*c+d}, v{vU+4*c+d+1}, v{vU+4*c+d}, 2")
        P.e(f"v_alignbyte_b32 v{us+4*c+3}, v{vUn+c}, v{vU+4*c+3}, 2")
        P.e(f"ds_write_b128 v{u0}, {vr(us+4*c,4)} offset:{9152*c}", tag="uw")
    P += epi(*T[3])
    stamp(P, "hst")
    P.wlg("LDS"); P.e("s_barrier")
    AR.release("acc", "fb", "sacc", "hp")

    cf = aa("cf", 128, 4); vSt = aa("st", 16, 4)
    cacc = 224
    def conv_reads(s_):
        s = Stream(); b = cf + 64 * (s_ % 2)
        for i in range(8):
            s.e(f"ds_read_b128 {vr(b+4*i,4)}, v{vCA} offset:{i*512 + s_*64}", tag=f"cA{s_}_{i}")
            s.e(f"ds_read_b128 {vr(b+32+4*i,4)}, v{vCB} offset:{(7-i)*512 + s_*64}", tag=f"cB{s_}_{i}")
        return s
    def conv_mfma(s_):
        s = Stream(); b = cf + 64 * (s_ % 2)
        done = set()
        for n in range(8):
            s.wlg(f"cA{s_}_{n}", f"cB{s_}_{n}")
            prods = [(i, r) for i in range(n + 1) for r in range(n + 1) if i + r <= 7 and (i, r) not in done]
            prods.sort(key=lambda p: (min(p), p))
            for (i, r) in prods:
                done.add((i, r)); t = cacc + 4 * (i + r)
                first = (s_ == 0 and not any((a + c == i + r) and (a, c) != (i, r) for (a, c) in done))
                s.e(f"v_mfma_f32_16x16x32_bf16 {ar(t,4)}, {vr(b+4*i,4)}, {vr(b+32+4*r,4)}, {'0' if first else ar(t,4)}")
        return s
    P += conv_reads(0)
    side = Stream()
    for g in range(2, 8): side += w2_read(g); side += w2_dma(g + 6)
    side = list(side)
    nq = opt.get("w2steps", 3)
    q4 = -(-len(side) // nq)
    for h in range(2):
        for k in range(4): V.release(f"XA{h}{k}", f"XB{h}{k}")
        for k in range(2): V.release(f"WA{h}{k}")
    for q in range(4): V.release(f"DX{q}", f"DW{q}")
    vGW = [va(f"GW{q}") for q in range(4)]; vGR, vGR2, vAW, vAR, vOut, vCW, vCR, vYA, vSA, vMA, vRA = [va(n) for n in "GR GR2 AW AR out CW CR YA SA MA RA".split()]
    sYst, sYld, sOo, sF2w, sF2r, sSTl = sXo, sWo, sSt, sP0o, sP0m, sHal
    TS = Stream()
    TS.e(f"""
v_and_b32 v{t0}, 15, v0
v_lshlrev_b32 v{t1}, 2, v{vl4}
v_xor_b32 v{t0}, v{t0}, v{t1}
v_lshlrev_b32 v{t0}, 4, v{t0}
v_lshl_add_u32 v{t0}, v{vl4}, 8, v{t0}
s_add_u32 s{sT0}, s{sM0b}, {CA}
v_add_u32 v{vCW}, s{sT0}, v{t0}
v_and_b32 v{t1}, 3, v0
v_lshlrev_b32 v{t2}, 2, v{vl4}
v_bfe_u32 v{t3}, v0, 2, 1
v_lshl_add_u32 v{t2}, v{t3}, 1, v{t2}
v_bfe_u32 v{t3}, v0, 3, 1
v_add_u32 v{t2}, v{t2}, v{t3}
v_lshlrev_b32 v{t3}, 2, v{t1}
v_xor_b32 v{t2}, v{t2}, v{t3}
v_lshlrev_b32 v{t2}, 4, v{t2}
v_lshl_add_u32 v{t2}, v{t1}, 8, v{t2}
s_lshl_b32 s{sT1}, s{sW}, 11
s_add_u32 s{sT0}, s{sT1}, {CA}
v_add_u32 v{vCR}, s{sT0}, v{t2}
s_add_u32 s{sYst}, s{sCHo}, s{sT1}
s_add_u32 s{sYst}, s{sYst}, {WS_Y2}
s_add_u32 s{sF2w}, s{sF0w}, {MB2 - MB0}
s_lshl_b32 s{sF2r}, s{sCB}, 2
s_add_u32 s{sF2r}, s{sF2r}, s{sW}
s_lshl_b32 s{sF2r}, s{sF2r}, 2
s_lshr_b32 s{sT0}, s{sRB}, 3
s_add_u32 s{sF2r}, s{sF2r}, s{sT0}
s_lshl_b32 s{sF2r}, s{sF2r}, 7
s_add_u32 s{sF2r}, s{sF2r}, {MB2}
s_lshl_b32 s{sYld}, s{sCB}, 18
s_lshl_b32 s{sT0}, s{sRB}, 8
s_add_u32 s{sYld}, s{sYld}, s{sT0}
s_add_u32 s{sYld}, s{sYld}, {WS_Y2}
v_lshlrev_b32 v{t0}, 13, v{vPair}
v_lshl_add_u32 v{vYA}, v{vl7}, 4, v{t0}
s_mul_i32 s{sOo}, s{sRB}, {64*896}
s_lshl_b32 s{sT1}, s{sCB}, 7
s_add_u32 s{sOo}, s{sOo}, s{sT1}
v_and_b32 v{t0}, 31, v0
v_lshlrev_b32 v{t0}, 8, v{t0}
v_add_u32 v{t0}, s{sM0b}, v{t0}
v_xor_b32 v{t1}, v{vl7}, v{vl5}""")
    for q in range(4): TS.e(f"v_xor_b32 v{t2}, {2*q}, v{t1}\nv_lshl_add_u32 v{vGW[q]}, v{t2}, 4, v{t0}")
    TS.e(f"""
v_lshlrev_b32 v{t0}, 1, v{vl7}
v_xor_b32 v{t0}, v{t0}, v{vl3}
v_lshlrev_b32 v{t1}, 8, v{vPair}
v_lshl_add_u32 v{vGR}, v{t0}, 4, v{t1}
v_xor_b32 v{vGR2}, 16, v{vGR}
s_lshl_b32 s{sT0}, s{sW}, 4
v_xor_b32 v{vAR}, s{sT0}, v{vGR}
v_add_u32 v{vAR}, {L_AP}, v{vAR}
v_lshrrev_b32 v{t0}, 1, v{vPair}
v_xor_b32 v{t0}, v{t0}, v{vl7}
v_lshlrev_b32 v{t0}, 4, v{t0}
v_and_b32 v{t1}, 1, v{vPair}
v_lshl_add_u32 v{t0}, v{t1}, 3, v{t0}
v_lshl_add_u32 v{t0}, v{vl7}, 11, v{t0}
v_add_u32 v{vAW}, {L_AP}, v{t0}
v_mul_u32_u24 v{t0}, 896, v{vPair}
v_lshl_add_u32 v{vOut}, v{vl7}, 4, v{t0}
v_lshlrev_b32 v{t0}, 6, v{vl7}
v_add_u32 v{vMA}, {L_STT}, v{t0}
v_lshlrev_b32 v{t1}, 3, v{vPair}
v_add_u32 v{vRA}, {L_STT}, v{t1}
s_mul_i32 s{sSTl}, s{sRB}, 7168
s_lshl_b32 s{sT0}, s{sW}, 8
s_add_u32 s{sSTl}, s{sSTl}, s{sT0}
s_add_u32 s{sSTl}, s{sSTl}, {WS_ST}
v_and_b32 v{t0}, 15, v0
v_lshlrev_b32 v{t0}, 4, v{t0}
v_lshl_add_u32 v{vSA}, v{vl4}, 10, v{t0}""")
    STL = Stream()
    poll_check(STL, sF3r, "poll3", 7)
    STL.e(f"""
v_add_u32 v{t2}, 4096, v{vSA}
v_cmp_gt_u32 vcc, 48, v0
v_bfrev_b32 v{t3}, 2
v_cndmask_b32 v{t2}, v{t3}, v{t2}, vcc""")
    STL.e(f"buffer_load_dwordx2 {vr(vSt,2)}, v{vSA}, {srd(sWS)}, s{sSTl} offen sc1\nbuffer_load_dwordx2 {vr(vSt+2,2)}, v{t2}, {srd(sWS)}, s{sSTl} offen sc1", tag="st")
    p3 = Stream(); poll_issue(p3, sF3r, "poll3")
    sgh = Stream(); signal(sgh, "hst", sF1w)
    pub = opt.get("pubh", 2 * 36 + 18)
    for s_ in range(4):
        stamp(P, f"cv_{s_}")
        fill = []
        if s_ < 3: fill.append((conv_reads(s_ + 1), 4, 32))
        fill.append(side[s_ * q4:(s_ + 1) * q4])
        if s_ == 0: fill.append((p3, 0, 1)); fill.append(TS[:40])
        if s_ == 1: fill.append((TS[40:], 0, 28)); fill.append((STL, 30, 36))
        if pub // 36 == s_: fill.append((sgh, pub % 36, pub % 36 + 1))
        P += merge(conv_mfma(s_), *fill)
    stamp(P, "convdone")
    if pub >= 144: P += sgh
    P.e("s_barrier")
    for t in range(8): P.e(f"ds_write_b128 v{vCW}, {ar(cacc+4*t,4)} offset:{t*1024}", tag="cw")
    P.wvm("st")
    bfr = lambda r: f"v_cvt_pk_bf16_f32 v{r}, v{r}, v{r}\nv_lshlrev_b32 v{r}, 16, v{r}"
    P.e(f"""
v_pk_add_f32 {vr(vSt,2)}, {vr(vSt,2)}, {vr(vSt+2,2)}
v_mov_b32 v{vSt+2}, v{vSt}
v_mov_b32 v{vSt+3}, v{vSt+1}
v_permlane32_swap_b32 v{vSt}, v{vSt+2}
v_permlane32_swap_b32 v{vSt+1}, v{vSt+3}
v_pk_add_f32 {vr(vSt,2)}, {vr(vSt,2)}, {vr(vSt+2,2)}
v_mov_b32 v{vSt+2}, v{vSt}
v_mov_b32 v{vSt+3}, v{vSt+1}
v_permlane16_swap_b32 v{vSt}, v{vSt+2}
v_permlane16_swap_b32 v{vSt+1}, v{vSt+3}
v_pk_add_f32 {vr(vSt,2)}, {vr(vSt,2)}, {vr(vSt+2,2)}
v_mul_f32 v{vSt}, {1.0/448!r}, v{vSt}
v_mul_f32 v{vSt+1}, {1.0/448!r}, v{vSt+1}
v_fma_f32 v{vSt+1}, -v{vSt}, v{vSt}, v{vSt+1}
v_max_f32 v{vSt+1}, 0, v{vSt+1}
{bfr(vSt)}
{bfr(vSt+1)}
v_add_f32 v{vSt+1}, 0x3727c5ac, v{vSt+1}
{bfr(vSt+1)}
v_sqrt_f32 v{vSt+1}, v{vSt+1}
{bfr(vSt+1)}
v_rcp_f32 v{vSt+1}, v{vSt+1}
s_lshl_b32 s{sT0}, s{sW}, 7
s_add_u32 s{sT0}, s{sT0}, {L_STT}
v_and_b32 v{t0}, 15, v0
v_lshl_add_u32 v{t0}, v{t0}, 3, s{sT0}""")
    P.e(f"ds_write_b64 v{t0}, {vr(vSt,2)}", tag="stw")
    P.wlg("LDS"); P.e("s_barrier")
    yr = cf
    for tt in range(2):
        for w in range(4): P.e(f"ds_read_b128 {vr(yr+16*tt+4*w,4)}, v{vCR} offset:{w*8192+tt*1024}", tag=f"yr{tt}")
    vMR = vSt; vRr = va("rr", 2); vY = vSS
    for q in range(4): P.e(f"ds_read_b128 {vr(vMR+4*q,4)}, v{vMA} offset:{16*q}", tag="mr")
    P.e(f"ds_read_b32 v{vRr}, v{vRA} offset:4\nds_read_b32 v{vRr+1}, v{vRA} offset:{256+4}", tag="mr")
    poll_issue(P, sF1r, "poll1")
    for tt in range(2):
        P.wlg(f"yr{tt}")
        b = yr + 16 * tt
        P.e(f"""
v_pk_add_f32 {vr(b,2)}, {vr(b,2)}, {vr(b+4,2)}
v_pk_add_f32 {vr(b+2,2)}, {vr(b+2,2)}, {vr(b+6,2)}
v_pk_add_f32 {vr(b+8,2)}, {vr(b+8,2)}, {vr(b+12,2)}
v_pk_add_f32 {vr(b+10,2)}, {vr(b+10,2)}, {vr(b+14,2)}""")
        for r in range(4): P.e(f"v_cvt_pk_bf16_f32 v{b+4+r}, v{b+r}, v{b+8+r}")
        P.e(f"buffer_store_dwordx4 {vr(b+4,4)}, v{vl16}, {srd(sWS)}, s{sYst} offen offset:{tt*1024} sc1", tag="yst")
    stamp(P, "yst")
    poll_check(P, sF1r, "poll1", 7)
    stamp(P, "g2go")
    NH = 16; hf = cf + 64; gacc = cf
    order = [(st, c, kb) for st in range(2) for c in range(7) for kb in range(4)]
    def hload(n):
        st, c, kb = order[n]
        s = Stream()
        txt = f"buffer_load_dwordx4 {vr(hf+4*(n%NH),4)}, v{vl16}, {srd(sWS)}, s{sHo} offen offset:{kb*1024} sc1"
        if kb == 3:
            adv = 8192 if c < 6 else (4096 - 6*8192)
            s.glue(txt + (f"\ns_add_u32 s{sHo}, s{sHo}, {adv & 0xffffffff}" if n < 55 else ""), tag=f"h{n}")
        else: s.e(txt, tag=f"h{n}")
        return s
    NPRE = opt.get("npre", 12)
    for n in range(NPRE): P += hload(n)
    V.release("sel", "D20", "D21", "D22", "D23", "tap", "EW", "ERx", "ECx", "K0", "KV", "HS", "Dd", "P0")
    xf = vKVf
    XN = Stream()
    XN.wlg("mr")
    xt = va("xt", 2)
    for i in range(8):
        m2 = vMR + 2 * i
        XN.e(f"""
v_lshlrev_b32 v{xt}, 16, v{vXP+i}
v_and_b32 v{xt+1}, 0xffff0000, v{vXP+i}
v_pk_mul_f32 {vr(vKVf+2*i,2)}, {vr(vKVf+2*i,2)}, {vr(vDf,2)}
v_pk_add_f32 {vr(t0+1,2)}, {vr(xt,2)}, {vr(m2,2)} op_sel_hi:[1,0] neg_lo:[0,1] neg_hi:[0,1]
v_pk_mul_f32 {vr(m2,2)}, {vr(t0+1,2)}, {vr(m2,2)} op_sel:[0,1] op_sel_hi:[1,1]
v_pk_fma_f32 {vr(xf+2*i,2)}, {vr(m2,2)}, {vr(vKVf+2*i,2)}, {vr(xt,2)}""")
    assert (t0 + 1) % 2 == 0
    P += XN
    def g2_part(lo, hi):
        s = Stream()
        for n in range(lo, hi):
            st, c, kb = order[n]
            s.wvm(f"h{n}")
            g = (4*c + kb) // 2
            if st == 0 and g >= 8: s.wlg(f"w2r{g}")
            for dt in range(2):
                a = gacc + (2*dt+st)*16; wa = ((4*c + kb) * 2 + dt) * 4
                s.e(f"v_mfma_f32_32x32x16_bf16 {vr(a,16)}, {ar(wa,4)}, {vr(hf+4*(n%NH),4)}, {'0' if (c, kb) == (0, 0) else vr(a,16)}")
            if n + NPRE < 56: s += hload(n + NPRE)
        return s
    def gwrite(st):
        s = Stream()
        for dt in range(2):
            for q in range(4):
                s.e(f"ds_write_b128 v{vGW[q]}, {vr(gacc+(2*dt+st)*16+4*q,4)} offset:{st*SLOT+dt*128}", tag=f"gw{st}")
        return s
    late = Stream()
    for g in range(8, 14): late += w2_read(g)
    sgy = Stream(); signal(sgy, "yst", sF2w)
    P += merge(g2_part(0, 28), (sgy, 0, 1), (late, 1, 26))
    def gread(st, b):
        s = Stream()
        for w in range(4):
            s.e(f"ds_read_b128 {vr(b+8*w,4)}, v{vGR} offset:{w*8192+st*SLOT}\nds_read_b128 {vr(b+8*w+4,4)}, v{vGR2} offset:{w*8192+st*SLOT}", tag=f"rd{st}")
        return s
    R0 = Stream()
    R0.wlg("gw0"); R0.e("s_barrier")
    lo0, hi0 = gacc, gacc + 32
    for w in range(4):
        b = (lo0 if w < 2 else hi0) + 8 * (w % 2)
        R0.e(f"ds_read_b128 {vr(b,4)}, v{vGR} offset:{w*8192}\nds_read_b128 {vr(b+4,4)}, v{vGR2} offset:{w*8192}", tag="rd0")
    R0.wlg("rd0")
    for r in range(8): R0.e(f"v_add_f32 v{lo0+r}, v{lo0+r}, v{lo0+8+r}\nv_add_f32 v{hi0+r}, v{hi0+r}, v{hi0+8+r}")
    for r in range(8): R0.e(f"v_add_f32 v{lo0+r}, v{lo0+r}, v{hi0+r}")
    yp = Stream(); poll_issue(yp, sF2r, "poll2")
    yl = Stream()
    poll_check(yl, sF2r, "poll2", 8)
    yl.e(f"buffer_load_dwordx4 {vr(vY,4)}, v{vYA}, {srd(sWS)}, s{sYld} offen sc1\nbuffer_load_dwordx4 {vr(vY+4,4)}, v{vYA}, {srd(sWS)}, s{sYld} offen offset:128 sc1", tag="y")
    AP = Stream()
    AP.wvm("y")
    for i in range(8):
        yreg = vY + (i % 2) * 4 + i // 2
        AP.e(f"""
v_lshlrev_b32 v{t1}, 16, v{yreg}
v_and_b32 v{t2}, 0xffff0000, v{yreg}
v_fma_f32 v{xf+2*i}, v{vMR+2*i}, v{t1}, v{xf+2*i}
v_fma_f32 v{xf+2*i+1}, v{vMR+2*i+1}, v{t2}, v{xf+2*i+1}
v_xor_b32 v{t0 if i % 2 else t3}, {i*16}, v{vAW}""")
        AP.e(f"ds_write_b64 v{t0 if i % 2 else t3}, {vr(xf+2*i,2)} offset:{i*256}", tag="aw")
    ypos = opt.get("ypos", 24)
    aplo = opt.get("aplo", 46)
    P += merge(g2_part(28, 56), (gwrite(0), 2, 10), (R0, 12, 23), (yp, ypos, ypos+1), (yl, ypos + 8, ypos + 10), (AP, aplo, 56))
    stamp(P, "g2done")
    P += gwrite(1)
    P.e(f"v_xor_b32 v{t3}, 16, v{vAR}\nv_xor_b32 v{t0}, 64, v{vAR}\nv_xor_b32 v{t1}, 80, v{vAR}\ns_add_u32 s{sT1}, s{sOo}, {32*896}")
    P.wlg("LDS"); P.e("s_barrier")
    stamp(P, "lastbar")
    rd = hf
    P.e(f"ds_read_b128 {vr(rd+32,4)}, v{vAR}\nds_read_b128 {vr(rd+36,4)}, v{t3}", tag="ra0")
    P += gread(1, rd)
    P.e(f"ds_read_b128 {vr(rd+40,4)}, v{t0} offset:8192\nds_read_b128 {vr(rd+44,4)}, v{t1} offset:8192", tag="ra1")
    ost = opt.get("ost", "")
    P.wlg("ra0")
    for r in range(0, 8, 2): P.e(f"v_pk_fma_f32 {vr(lo0+r,2)}, {vr(lo0+r,2)}, {vr(vRr,2)}, {vr(rd+32+r,2)} op_sel:[0,0,0] op_sel_hi:[1,0,1]")
    for r in range(4): P.e(f"v_cvt_pk_bf16_f32 v{lo0+8+r}, v{lo0+2*r}, v{lo0+2*r+1}")
    P.e(f"buffer_store_dwordx4 {vr(lo0+8,4)}, v{vOut}, {srd(sO)}, s{sOo} offen {ost}", tag="ost")
    P.wlg("rd1")
    b = rd
    for r in range(0, 8, 2):
        P.e(f"v_pk_add_f32 {vr(b+r,2)}, {vr(b+r,2)}, {vr(b+8+r,2)}\nv_pk_add_f32 {vr(b+16+r,2)}, {vr(b+16+r,2)}, {vr(b+24+r,2)}")
    for r in range(0, 8, 2): P.e(f"v_pk_add_f32 {vr(b+r,2)}, {vr(b+r,2)}, {vr(b+16+r,2)}")
    P.wlg("ra1")
    for r in range(0, 8, 2): P.e(f"v_pk_fma_f32 {vr(b+r,2)}, {vr(b+r,2)}, {vr(vRr,2)}, {vr(b+40+r,2)} op_sel:[0,1,0] op_sel_hi:[1,1,1]")
    for r in range(4): P.e(f"v_cvt_pk_bf16_f32 v{b+8+r}, v{b+2*r}, v{b+2*r+1}")
    P.e(f"buffer_store_dwordx4 {vr(b+8,4)}, v{vOut}, {srd(sO)}, s{sT1} offen {ost}", tag="ost")
    if opt.get("delay") == "sleepend": P.e("s_sleep 127")
    if opt.get("dead"):
        if "deadwg" in opt: P.e(f"s_cmp_lg_u32 s2, {opt['deadwg']}\ns_cbranch_scc1 DEADX")
        P.e(f"DEADL:\ns_memrealtime s[92:93]\ns_waitcnt lgkmcnt(0)\ns_sub_u32 s92, s92, s4\ns_cmp_lt_u32 s92, {opt['dead']}\ns_cbranch_scc1 DEADL\nDEADX:")
    P.e(f"s_lshl_b32 s3, s2, 2\ns_add_u32 s3, s3, s{sW}\ns_cmp_lg_u32 s3, 128\ns_cbranch_scc1 NOEP")
    P.append(I(f"s_atomic_swap s{sTAG}, s[26:27], 0", kind="cond"))
    P.e("NOEP:")
    if diag:
        stamp(P, "ostiss")
        P.wvm("ALL")
        stamp(P, "end")
        P.e(f"s_waitcnt lgkmcnt(0)\ns_mul_i32 s{sT2}, s{sRB}, 7\ns_add_u32 s{sT2}, s{sT2}, s{sCB}\ns_lshl_b32 s{sT2}, s{sT2}, 2\ns_add_u32 s{sT2}, s{sT2}, s{sW}\ns_lshl_b32 s{sT2}, s{sT2}, 6\ns_add_u32 s{sT2}, s{sT2}, {WS_STAMP}\ns_mov_b64 exec, 1")
        for i, r in enumerate([4] + used_st + [used_st[-1]] * (9 - len(used_st))):
            P.e(f"v_mov_b32 v{t0}, s{r}\nbuffer_store_dword v{t0}, v{vZero}, {srd(sWS)}, s{sT2} offen offset:{4*i}")
    P.e("END:\ns_endpgm")
    H2 = Stream().e("HELPER:")
    if opt.get("htouch"):
        H2.e("s_waitcnt lgkmcnt(0)\nv_mov_b32 v3, 0\ns_mov_b64 exec, 1")
        for p in (4, 18, 6, 8, 10, 14, 12, 20, 22): H2.e(f"global_load_dword v4, v3, s[{p}:{p+1}]")
        for k in range(6): H2.e(f"global_load_dword v4, v3, s[26:27]\nv_add_u32 v3, 0x200000, v3")
    H2.e("s_waitcnt vmcnt(0)\ns_endpgm")
    for x in H2: x.kind = "cond"
    ins = resolve_waits(place_m0(flatten(P)))
    ins = pad_hazards(ins) + pad_hazards(list(tail)) + pad_hazards(list(H2))
    body = "\n".join(("" if x.t.endswith(":") else "  ") + x.t for x in ins)
    hdr = open("parallel_sum__ssm_conv_h3__dense_activation_relu__prompt.s.ref").read().split("; Override launch")[0]
    pad = opt.get("pad", 3328)
    return f"""{hdr}; generated by gen/gen2.py (own generator); fused LN + short conv + long conv (Toeplitz MFMA) + MLP
; @launch grid=(256,1,1) block=(256,1,1) lds={LDS_SIZE}
.amdgcn_target "amdgcn-amd-amdhsa--gfx950"
.text
.globl {KN}
.p2align 12
.fill {pad//4}, 4, 0xbf800000
.p2align 8
.type {KN},@function
{KN}:
{body}
CODE_END:
.section .rodata,"a"
.p2align 6
.amdhsa_kernel {KN}
  .amdhsa_next_free_vgpr 512
  .amdhsa_next_free_sgpr 102
  .amdhsa_accum_offset 256
  .amdhsa_group_segment_fixed_size 0
  .amdhsa_kernarg_size 96
  .amdhsa_user_sgpr_count 2
  .amdhsa_user_sgpr_kernarg_segment_ptr 1
  .amdhsa_system_sgpr_workgroup_id_x 1
  .amdhsa_float_denorm_mode_32 3
.end_amdhsa_kernel
"""

if __name__ == "__main__":
    opt = {}
    out = "parallel_sum__ssm_conv_h3__dense_activation_relu__prompt.s"
    for a in sys.argv[1:]:
        k, v = a.split("=")
        if k == "out": out = v
        else: opt[k] = int(v) if v.lstrip("-").isdigit() else v
    open(out, "w").write(gen(opt))
    print("wrote", out)
```

```python
import re

class I:
    __slots__ = ("t", "tag", "kind", "m0")
    def __init__(self, t, tag=None, kind=None, m0=None):
        self.t = t; self.tag = tag; self.kind = kind; self.m0 = m0
    def __repr__(self): return self.t

def _regs(tok):
    tok = tok.strip()
    neg = tok.lstrip("-|").rstrip("|")
    m = re.fullmatch(r"abs\((.*)\)", neg)
    if m: neg = m.group(1)
    m = re.fullmatch(r"([vas])\[(\d+):(\d+)\]", neg)
    if m: return [f"{m.group(1)}{i}" for i in range(int(m.group(2)), int(m.group(3)) + 1)]
    m = re.fullmatch(r"([vas])(\d+)", neg)
    if m: return [neg]
    if neg == "vcc": return ["vcc"]
    if neg == "exec": return ["exec"]
    if neg == "m0": return ["m0"]
    return []

def parse(t):
    t = t.split(";")[0].strip()
    if not t or t.endswith(":") or t.startswith("."): return ("", [], [])
    p = t.split(None, 1)
    op = p[0]
    rest = p[1] if len(p) > 1 else ""
    ops = [o.strip() for o in re.split(r",(?![^\[]*\])", rest)]
    toks = []
    for o in ops:
        toks.append(o.split()[0] if o.split() else "")
    R = [_regs(x) for x in toks]
    dst, src = [], []
    if op.startswith(("buffer_store", "global_store", "ds_write", "buffer_atomic")):
        for r in R: src += r
    elif op.startswith(("buffer_load", "global_load")):
        if " lds" in t or op.startswith("global_load_lds"):
            for r in R: src += r
            src.append("m0")
        else:
            dst += R[0]
            for r in R[1:]: src += r
    elif op.startswith(("s_cmp", "s_cbranch", "s_branch", "s_waitcnt", "s_barrier", "s_nop", "s_sleep", "s_endpgm", "s_setprio")):
        for r in R: src += r
    elif op.startswith("v_cmp"):
        dst += R[0]
        for r in R[1:]: src += r
    elif op.startswith(("v_permlane32_swap", "v_permlane16_swap", "v_swap")):
        dst += R[0] + R[1]; src += R[0] + R[1]
    elif op.startswith(("v_add_co", "v_addc_co", "v_sub_co")):
        dst += R[0] + R[1]
        for r in R[2:]: src += r
    else:
        if R: dst += R[0]
        for r in R[1:]: src += r
        if op.startswith(("v_fmac", "v_dot2c", "v_writelane")) or "_dpp" in op: src += R[0]
        if op.startswith("v_cndmask") and len(R) == 3: src.append("vcc")
    return (op, dst, src)

def is_vmem(op): return op.startswith(("buffer_", "global_"))
def is_ds(op): return op.startswith("ds_")
def is_smem(op): return op.startswith(("s_load", "s_memtime", "s_memrealtime", "s_buffer_load", "s_atomic"))
def is_mfma(op): return op.startswith("v_mfma")
def is_valu(op): return op.startswith("v_") and not is_mfma(op)
def is_trans(op): return re.match(r"v_(exp|log|rcp|rsq|sqrt|sin|cos)_", op) is not None
def mfma_passes(op):
    if "32x32x16" in op: return 8
    if "16x16x32" in op: return 4
    raise ValueError(op)

class Stream(list):
    def e(self, t, tag=None):
        for line in t.strip("\n").split("\n"):
            line = line.strip()
            if line: self.append(I(line, tag))
        return self
    def dma(self, t, m0, tag=None, kind=None):
        self.append(I(t, tag, kind, m0)); return self
    def wvm(self, *tags): self.append(I("WVM " + " ".join(tags), kind="wvm")); return self
    def wlg(self, *tags): self.append(I("WLG " + " ".join(tags), kind="wlg")); return self
    def glue(self, t, tag=None):
        g = Stream().e(t, tag)
        self.append(list(g)); return self

def flatten(s):
    out = []
    for x in s:
        if isinstance(x, list): out += flatten(x)
        else: out.append(x)
    return out

def merge(main, *fill, lead=0, every=None):
    main = list(main)
    pos = [i for i, x in enumerate(main) if not isinstance(x, list) and x.t.startswith("v_mfma")]
    n = len(pos)
    slots = [[] for _ in range(n)]
    for f in fill:
        lo, hi = 0, n
        if isinstance(f, tuple): f, lo, hi = f
        f = list(f)
        m = len(f)
        for k, it in enumerate(f):
            slots[lo + (k * (hi - lo)) // max(m, 1)].append(it)
    out = Stream()
    si = 0
    for i, x in enumerate(main):
        out.append(x)
        if si < n and i == pos[si]:
            out += slots[si]; si += 1
    return out

def resolve_waits(ins, dummy=None):
    out = []
    vm = []
    lg = []
    sm = set(); sm_done = set(); smw = {}
    vm_done = 0; lg_done = 0
    for x in ins:
        if x.kind == "wvm":
            tags = x.t.split()[1:]
            if tags == ["ALL"]: idx = len(vm) - 1
            else:
                c = [i for i, t in enumerate(vm) if t in tags]
                for t in tags: assert t in vm, f"wvm: tag {t} not issued"
                idx = max(c)
            if idx < vm_done and tags != ["ALL"]: continue
            n = len(vm) - 1 - idx
            out.append(I(f"s_waitcnt vmcnt({min(n, 63)})"))
            vm_done = len(vm) - min(n, 63)
            continue
        if x.kind == "wlg":
            tags = x.t.split()[1:]
            if tags == ["ALL"] or any(t in sm for t in tags):
                out.append(I("s_waitcnt lgkmcnt(0)")); lg_done = len(lg); sm.clear(); continue
            tags = [t for t in tags if t not in sm_done]
            if not tags: continue
            if tags == ["LDS"]: idx = len(lg) - 1
            else:
                for t in tags: assert t in lg, f"wlg: tag {t} not issued"
                idx = max(i for i, t in enumerate(lg) if t in tags)
            if idx < lg_done: continue
            n = len(lg) - 1 - idx
            wgt = sum(smw[t] for t in sm)
            while dummy and n < wgt:
                out.append(I(dummy)); lg.append("dummy"); n += 1
            out.append(I(f"s_waitcnt lgkmcnt({min(n, 15)})"))
            lg_done = len(lg) - min(n, 15)
            if n == 0: sm.clear()
            continue
        op = x.t.split()[0]
        if x.kind != "cond":
            if is_vmem(op): vm.append(x.tag)
            elif is_ds(op): lg.append(x.tag)
            elif is_smem(op):
                if x.tag not in sm: smw[x.tag] = 0
                smw[x.tag] += 0 if x.tag == "stamp" else (1 if op.startswith("s_atomic") else 2)
                sm.add(x.tag); sm_done.add(x.tag)
        out.append(x)
    fused = []
    for x in out:
        if fused and x.t.startswith("s_waitcnt") and fused[-1].t.startswith("s_waitcnt"):
            a = dict(re.findall(r"(\w+)\((\d+)\)", fused[-1].t)); b = dict(re.findall(r"(\w+)\((\d+)\)", x.t))
            for k, v in b.items(): a[k] = str(min(int(v), int(a.get(k, 99))))
            fused[-1] = I("s_waitcnt " + " ".join(f"{k}({v})" for k, v in sorted(a.items(), reverse=True)))
        else: fused.append(x)
    return fused

def pad_hazards(ins, verbose=False):
    out = []
    hist = []
    now = 0; pipe = 0; c1 = 0
    for x in ins:
        op, dst, src = parse(x.t)
        if not op:
            out.append(x); continue
        S, D = set(src), set(dst)
        need = 0
        for (pop, pd, ps, tm, pt, tc) in reversed(hist):
            if c1 - tc > 30: break
            req = 0
            pd_ = set(pd)
            if is_mfma(pop):
                P = mfma_passes(pop)
                pc = set(_regs(pt.split(",")[-1].split()[0]))
                if is_mfma(op):
                    toks = [o.strip() for o in re.split(r",(?![^\[]*\])", x.t.split(None, 1)[1])]
                    ab = set(_regs(toks[1]) + _regs(toks[2])); c = set(_regs(toks[3].split()[0]))
                    if pd_ & ab: req = max(req, {4: 8, 8: 12}[P])
                    if pd_ & c and not (pd_ == c and mfma_passes(op) == P): req = max(req, {4: 6, 8: 10}[P])
                    if pd_ & D and not (pd_ & c): req = max(req, {4: 8, 8: 12}[P])
                else:
                    if pd_ & (S | D): req = max(req, {4: 8, 8: 12}[P])
                    if is_valu(op) and pc & D: req = max(req, {4: 3, 8: 7}[P])
            elif is_valu(pop):
                vd = {r for r in pd_ if r[0] in "va" and r not in ("vcc",)}
                sd = {r for r in pd_ if r[0] == "s" or r == "vcc"}
                if is_mfma(op) and vd & S: req = max(req, 2)
                if is_mfma(op) and "exec" in pd_: req = max(req, 4)
                if is_valu(op):
                    if sd & S: req = max(req, 4 if op.startswith(("v_readlane", "v_writelane")) else 2)
                    if "_dpp" in op and vd & S: req = max(req, 2)
                    if op.startswith(("v_readlane", "v_readfirstlane")) and vd & S: req = max(req, 1)
                    if op.startswith("v_permlane") and vd & S: req = max(req, 2)
                    if is_trans(pop) and vd & S: req = max(req, 1)
                    if pop.startswith("v_dot") and vd & (S | D) and not (op == pop and not (vd & set(src[:-1])) ): req = max(req, 3)
                    if ("sdwa" in pop or "op_sel" in pt) and vd & (S | D): req = max(req, 1)
                if pop.startswith("v_dot") and not is_valu(op) and vd & S: req = max(req, 3)
                if is_vmem(op) and sd & S: req = max(req, 5)
                if op.startswith("s_") and sd & S and not op.startswith("s_cbranch"): req = max(req, 1)
            elif pop.startswith("s_"):
                if "m0" in pd_ and "m0" in S and is_vmem(op): req = max(req, 1)
            if pop.startswith(("buffer_store_dwordx4", "buffer_store_dwordx3", "global_store_dwordx4")):
                data = set(_regs(pt.split(None, 1)[1].split(",")[0])) if pop.startswith("buffer") else set()
                if data & D: req = max(req, 2)
            if req: need = max(need, (tm + 1 + req - now) if is_mfma(pop) else (tc + 1 + req - c1))
        while need > 0:
            k = min(need, 16)
            out.append(I(f"s_nop {k-1}")); now += k; c1 += k; need -= k
        if is_mfma(op):
            now = max(now, pipe); pipe = now + mfma_passes(op)
        out.append(x)
        hist.append((op, dst, src, now, x.t, c1))
        m = re.match(r"s_nop (\d+)", x.t)
        now += int(m.group(1)) + 1 if m else 1
        c1 += int(m.group(1)) + 1 if m else 1
        hist = hist[-40:]
    return out

class RegAlloc:
    def __init__(self, kind, lo, hi):
        self.kind = kind; self.free = set(range(lo, hi)); self.named = {}
    def alloc(self, name, n=1, align=1):
        if n > 1 and align == 1: align = 2
        for b in sorted(self.free, reverse=(n >= 8)):
            if b % align == 0 and all((b + i) in self.free for i in range(n)):
                for i in range(n): self.free.discard(b + i)
                self.named[name] = (b, n)
                return b
        raise RuntimeError(f"out of {self.kind} regs for {name} ({n})")
    def release(self, *names):
        for name in names:
            b, n = self.named.pop(name)
            for i in range(n): self.free.add(b + i)


def place_m0(ins):
    out = []; cur = None
    for x in ins:
        if x.t.endswith(":"): cur = None
        if x.m0 is not None and x.m0 != cur:
            r, c = x.m0
            t = f"s_mov_b32 m0, {c}" if r is None else f"s_add_u32 m0, s{r}, {c}"
            if r is not None and c == 0: t = f"s_mov_b32 m0, s{r}"
            p = out[-1] if out else None
            ok = p is not None and p.m0 is None and p.kind is None and p.t.split()[0].startswith(("v_mfma", "ds_read"))
            if ok: out.insert(len(out) - 1, I(t))
            else: out.append(I(t))
            cur = x.m0
        out.append(x)
    return out

def cost(x):
    if isinstance(x, list):
        c = [cost(y) for y in x]; return (sum(a for a, _ in c), sum(b for _, b in c))
    if x.kind == "mark": return (0, 0)
    if x.kind in ("wvm", "wlg"): return (4, 0)
    op = x.t.split()[0]
    if x.t.endswith(":"): return (0, 0)
    if is_vmem(op): return (12, 64 if "x4" in op else 32)
    if op.startswith("s_"): return (2, 0)
    return (4, 0)

class Sched:
    def __init__(self): self.chains = []
    def add(self, items, earliest=0, name=None, after=None):
        self.chains.append({"q": list(items), "e": earliest, "name": name, "after": after})
    def extend(self, name, items):
        c = [c for c in self.chains if c["name"] == name]
        if c: c[0]["q"] += list(items)
        else: self.add(items, 0, name)
    def done(self, name): return all(not c["q"] for c in self.chains if c["name"] == name)
    def take(self, step, issue, stream):
        out = []
        for c in self.chains:
            if c["e"] > step: continue
            if c["after"] and not self.done(c["after"]): continue
            while c["q"]:
                a, b = cost(c["q"][0])
                if out and (a > issue + 6 or b > stream + 16): break
                out.append(c["q"].pop(0)); issue -= a; stream -= b
        return out
    def flush(self, name=None):
        out = []
        for c in self.chains:
            if name is None or c["name"] == name:
                out += c["q"]; c["q"] = []
        return out


def mark(name): return I("MARK " + name, kind="mark")

def inject(P, queue, paces, default_pace=68, verbose=False):
    out = Stream(); seen = set([None]); q = list(queue)
    t = 0; pipe = 0; next_vm = 0; pace = default_pace; closed = False
    log = []
    def adv(x):
        nonlocal t, pipe
        for y in (x if isinstance(x, list) else [x]):
            if y.kind in ("mark",) or y.t.endswith(":"): continue
            op = y.t.split()[0]
            if op.startswith("v_mfma"):
                t = max(t, pipe); pipe = t + 4 * mfma_passes(op); t += 8
            elif op.startswith(("v_pk_", "v_dot")) and "i16" not in op: t = max(t, pipe) + 4
            elif op.startswith("s_barrier"): t += 30
            elif op.startswith("s_") or y.kind in ("wvm", "wlg"): t += 3
            elif is_vmem(op): t += 10
            elif op.startswith("ds_write_b128"): t += 12
            else: t += 4
    for x in P:
        if not isinstance(x, list) and x.kind == "mark":
            nm = x.t.split()[1]
            if nm == "CLOSE": closed = True; continue
            if nm == "OPEN": closed = False; continue
            nf = 0
            while any(d == nm for _, _, d in q):
                it = q.pop(0)[0]; out.append(it); adv(it); nf += 1
            seen.add(nm)
            if nm in paces:
                pace = paces[nm]; next_vm = min(next_vm, t)
            log.append(f"{nm}@{t}" + (f"(forced {nf})" if nf else "") + f"[{len(q)}]")
            continue
        out.append(x); adv(x)
        if isinstance(x, list): vmx = sum(cost(y)[1] for y in x)
        else: vmx = cost(x)[1]
        if vmx and pace: next_vm = max(next_vm, t - 64) + vmx * pace // 64
        if closed: continue
        n = 0
        while q and q[0][1] in seen and n < 2:
            it = q[0][0]; a, b = cost(it)
            if b:
                if pace is None or t < next_vm: break
                next_vm = max(next_vm, t - 64) + b * pace // 64
            elif a >= 4 and t > pipe + 8 and pipe > t - 200 and n >= 1: break
            q.pop(0); out.append(it); adv(it); n += 1 if a >= 4 else 0
    assert not q, [x[0] for x in q]
    if verbose: print(" ".join(log))
    return out
```

```python
import sys
from asmlib import *

KN = "parallel_sum__ssm_conv_h3__dense_activation_relu__prompt_kernel"
XB = 2048 * 448 * 2
WB = 448 * 1792 * 2
WS_E = 0
MB0, MB1, MB2, MB4 = 0x1000, 0x9000, 0xD000, 0x20000
WS_RT = 0x58000
WS_STAMP = 0x98000
WS_KVT = 0x100000
WS_Y2 = 0x3A0000
WS_H = 0x640000
WS_PX = WS_H + 0x700000
WS_END = WS_PX + 224 * 24576
SLOT = 32768
CA = 98304
CB = CA + 33280
MISC = 150016
L_EX = MISC
L_EXC = MISC + 1024
L_EXZ = MISC + 2048
L_STT = MISC + 2304
LDS_SIZE = MISC + 2304 + 512
P0K = CA; P0V = P0K + 9 * 1040
L_AP = 131840
assert L_AP >= CB and L_AP + 16384 <= MISC and L_AP % 256 == 0
LCG_A = 0x9E3779B1; LCG_C = 0x7F4A7C15

def helper(opt):
    H = Stream()
    bfr = lambda r: f"v_cvt_pk_bf16_f32 v{r}, v{r}, v{r}\nv_lshlrev_b32 v{r}, 16, v{r}"
    H.e(f"""
HELPER:
s_getpc_b64 s[30:31]
PCREF:
s_sub_u32 s30, s30, PCREF-{KN}
s_subb_u32 s31, s31, 0
v_lshlrev_b32 v1, 7, v0
v_min_u32 v1, CODE_END-{KN}-4, v1
global_load_dword v2, v1, s[30:31]
v_lshrrev_b32 v3, 6, v0
v_and_b32 v4, 63, v0
s_and_b32 s61, s2, 7
v_readfirstlane_b32 s60, v3
s_lshr_b32 s62, s2, 3
s_lshr_b32 s63, s61, 1
s_and_b32 s64, s61, 1
s_lshl_b32 s65, s63, 2
s_add_u32 s65, s65, s62
s_lshl_b32 s66, s65, 1
s_add_u32 s66, s66, s64
v_lshrrev_b32 v5, 3, v4
v_and_b32 v6, 7, v4
v_mul_u32_u24 v7, 896, v5
v_lshl_add_u32 v7, v6, 4, v7
v_add_u32 v8, 7168, v7
s_lshl_b32 s67, s66, 2
s_add_u32 s67, s67, s60
s_mul_i32 s67, s67, {16*896}
s_min_u32 s68, s65, 13
s_mul_i32 s69, s64, 14
s_add_u32 s68, s68, s69
s_lshl_b32 s68, s68, 7
s_mul_i32 s69, s60, {16*3584}
s_add_u32 s68, s68, s69
v_and_b32 v9, 15, v4
v_mul_u32_u24 v9, 3584, v9
s_mov_b32 s30, {XB}
s_mov_b32 s31, 0x20000
s_mov_b32 s42, {WB}
s_mov_b32 s43, 0x20000
s_mov_b32 s46, {WB}
s_mov_b32 s47, 0x20000
s_mov_b32 s54, {WS_END}
s_mov_b32 s55, 0x20000
s_waitcnt lgkmcnt(0)
s_mov_b64 s[28:29], s[4:5]
s_mov_b64 s[40:41], s[18:19]
s_mov_b64 s[44:45], s[20:21]
s_mov_b64 s[52:53], s[26:27]
s_load_dword s100, s[26:27], 0""")
    H.e(f"""
s_mov_b64 s[48:49], s[12:13]
s_mov_b32 s50, {XB}
s_mov_b32 s51, 0x20000
s_mov_b64 s[32:33], s[6:7]
s_mov_b32 s34, {XB}
s_mov_b32 s35, 0x20000
s_mov_b64 s[36:37], s[8:9]
s_mov_b32 s38, {XB}
s_mov_b32 s39, 0x20000""")
    after_x = None; nops = 0
    for item in opt.get("hprog", "kv,w,s,x,W").split(","):
        if item in ("xw", "x"):
            for st in range(7):
                H.e(f"""
buffer_load_dwordx4 v[{32+8*st}:{35+8*st}], v7, s[28:31], s67 offen offset:{st*128}
buffer_load_dwordx4 v[{36+8*st}:{39+8*st}], v8, s[28:31], s67 offen offset:{st*128}""")
                nops = 0
                if item == "xw":
                    H.e(f"s_mov_b64 exec, 0xffff\nbuffer_load_dword v10, v9, s[40:43], s68 offen\ns_mov_b64 exec, -1\ns_add_u32 s68, s68, {64*3584}")
                    nops = 1
        elif item == "s":
            H.e(f"""
s_lshl_b32 s69, s66, 13
v_lshlrev_b32 v11, 18, v3
v_lshl_add_u32 v11, v4, 7, v11
buffer_load_dword v15, v11, s[48:51], s69 offen
v_add_u32 v11, 0x100000, v11
buffer_load_dword v15, v11, s[48:51], s69 offen""")
            nops += 2
        elif item in ("kv", "k", "v"):
            H.e(f"""
s_mul_i32 s69, s66, {64*896}
s_sub_u32 s70, s69, 7168
s_cmp_eq_u32 s66, 0
s_cselect_b32 s70, 0, s70
v_lshlrev_b32 v11, 7, v0
v_add_u32 v12, {256*128}, v11
v_min_u32 v12, {503*128}, v12""")
            for r in (11, 12):
                for c in item:
                    H.e(f"buffer_load_dword v15, v{r}, s[{32 if c == 'k' else 36}:{35 if c == 'k' else 39}], s70 offen"); nops += 1
        elif item[0] == "W":
            g0 = int(item[1:] or 0); nl = (7 - g0) * 224
            H.e(f"s_lshl_b32 s69, s64, 2\ns_add_u32 s69, s69, s62\ns_mul_i32 s69, s69, {224*896}\ns_add_u32 s69, s69, {g0*32*896}\nv_lshlrev_b32 v11, 7, v0")
            for n in range(-(-nl // 256)):
                if (n + 1) * 256 > nl: H.e(f"v_min_u32 v11, {(nl - n * 256 - 1) * 128}, v11")
                H.e(f"buffer_load_dword v10, v11, s[44:47], s69 offen\ns_add_u32 s69, s69, 32768")
                nops += 1
        elif item[0] == "z":
            H.e(f"s_sleep {int(item[1:])}")
        elif item == "w":
            H.e(f"""
s_lshl_b32 s69, s64, 2
s_add_u32 s69, s69, s62
s_lshl_b32 s69, s69, 2
s_add_u32 s69, s69, s63
s_mul_i32 s69, s69, {392*128}
v_lshlrev_b32 v11, 7, v0
v_add_u32 v12, 32768, v11
v_min_u32 v12, {391*128}, v12
buffer_load_dword v10, v11, s[44:47], s69 offen
buffer_load_dword v10, v12, s[44:47], s69 offen""")
            nops += 2
    H.e("v_mov_b32 v14, 0x3f803f80\nv_mov_b32 v16, 0\nv_mov_b32 v17, 0\nv_mov_b32 v18, 0\nv_mov_b32 v19, 0\ns_waitcnt vmcnt(%d)" % nops)
    for st in range(7):
        for k in range(4):
            for h in range(2):
                r = 32 + 8*st + 4*h + k
                H.e(f"v_dot2_f32_bf16 v{16+2*h}, v{r}, v14, v{16+2*h}\nv_dot2_f32_bf16 v{17+2*h}, v{r}, v{r}, v{17+2*h}")
    for m in ("quad_perm:[1,0,3,2]", "quad_perm:[2,3,0,1]", "row_half_mirror"):
        for r in range(16, 20): H.e(f"v_add_f32_dpp v{r}, v{r}, v{r} {m} row_mask:0xf bank_mask:0xf")
    H.e(f"""
v_cmp_eq_u32 vcc, 1, v6
s_waitcnt lgkmcnt(0)
s_mul_i32 s100, s100, {LCG_A}
s_add_u32 s100, s100, {LCG_C}
v_cndmask_b32 v16, v16, v18, vcc
v_cndmask_b32 v17, v17, v19, vcc
v_mul_f32 v16, {-1.0/448!r}, v16
v_mul_f32 v17, {1.0/448!r}, v17
v_fma_f32 v17, -v16, v16, v17
v_max_f32 v17, 0, v17
{bfr(17)}
v_add_f32 v17, 0x3727c5ac, v17
{bfr(17)}
v_sqrt_f32 v17, v17
v_lshl_add_u32 v20, v6, 3, v5
v_lshlrev_b32 v20, 3, v20
v_cvt_pk_bf16_f32 v16, v16, v17
v_mov_b32 v17, s100
s_lshl_b32 s67, s66, 2
s_add_u32 s67, s67, s60
s_lshl_b32 s67, s67, 7
s_add_u32 s67, s67, {WS_RT}
v_cmp_gt_u32 vcc, 2, v6
s_barrier
s_and_saveexec_b64 s[70:71], vcc
buffer_store_dwordx2 v[16:17], v20, s[52:55], s67 offen sc1
s_mov_b64 exec, s[70:71]
s_cmp_lg_u32 s2, 0
s_cbranch_scc1 HEND""")
    H.e(f"""
v_lshrrev_b32 v21, 3, v0
v_lshlrev_b32 v21, 9, v21
v_lshl_add_u32 v21, v6, 2, v21
v_add_u32 v21, {MB0}, v21
v_subrev_u32 v22, 224, v0
v_lshlrev_b32 v22, 9, v22
v_add_u32 v22, {WS_RT + 4}, v22
v_cmp_gt_u32 vcc, 224, v0
s_mov_b32 s3, 100000
v_cndmask_b32 v21, v22, v21, vcc
HPOLL:
s_sleep 32
buffer_load_dword v23, v21, s[52:55], 0 offen sc1
s_sub_u32 s3, s3, 1
s_cmp_eq_u32 s3, 0
s_waitcnt vmcnt(0)
s_cbranch_scc1 HGO
v_cmp_ne_u32 vcc, s100, v23
s_cbranch_vccnz HPOLL
HGO:
s_barrier
s_cmp_lg_u32 s60, 0
s_cbranch_scc1 HEND
s_atomic_swap s100, s[26:27], 0
HEND:
s_endpgm""")
    return H

def gen(opt):
    diag = opt.get("diag", 0)
    p0pos = opt.get("p0pos", 3)
    V = RegAlloc("v", 1, 112); va = V.alloc
    RA, RB_, RC = 112, 176, 240
    sX, sK, sV, sW1, sW2, sH, sWS, sO = 28, 32, 36, 40, 44, 48, 52, 56
    S = RegAlloc("s", 60, 92)
    sa = lambda n: S.alloc(n)
    sW, sRB, sCB = [sa(n) for n in "W RB CB".split()]
    sXo, sWo, sSt, sM0a, sM0b, sXinc, sWinc = [sa(n) for n in "Xo Wo St M0a M0b Xinc Winc".split()]
    sT0, sT1, sT2 = sa("T0"), sa("T1"), sa("T2")
    sR, sHALF = 94, 95
    sPL = 92; sTAG = 100
    srd = lambda n: f"s[{n}:{n+3}]"
    vr = lambda b, n: f"v[{b}:{b+n-1}]" if n > 1 else f"v{b}"
    ar = lambda b, n: f"a[{b}:{b+n-1}]" if n > 1 else f"a{b}"
    stamp_regs = [6, 8, 12, 16, 18, 20, 22, 24]
    used_st = []
    sel = opt.get("stamps", "g1go,g1b_6,cv_0,convdone,g2go,g2done,ostiss,end").split(",")
    smn = 's_memtime' if diag == 2 else 's_memrealtime'
    def stamp(s, name):
        if diag and name in sel:
            r = stamp_regs[len(used_st)]; used_st.append(r)
            s.e(f"{smn} s[{r}:{r+1}]", tag="stamp")
    tail = Stream()
    npoll = [0]
    def spin(s, chk, reload, wait):
        k = npoll[0]; npoll[0] += 1
        s.glue(chk + f"\ns_cbranch_scc1 RETRY{k}\nOK{k}:")
        for t in f"""RETRY{k}:
s_mov_b32 s3, 100000
RL{k}:
{reload}
s_sub_u32 s3, s3, 1
s_cmp_eq_u32 s3, 0
s_waitcnt {wait}
s_cbranch_scc1 OK{k}
{chk}
s_cbranch_scc1 RL{k}
s_branch OK{k}""".split("\n"): tail.append(I(t, kind="cond"))
    pl = lambda sOff: f"s_load_dwordx8 s[{sPL}:{sPL+7}], s[26:27], s{sOff} glc"
    def poll_issue(s, sOff, tag): s.e(pl(sOff), tag=tag); return s
    def poll_check(s, sOff, tag):
        chk = "\n".join(f"s_xor_b64 s[{sPL+2*i}:{sPL+2*i+1}], s[{sPL+2*i}:{sPL+2*i+1}], s[{sTAG}:{sTAG+1}]" for i in range(4)) + f"""
s_or_b64 s[{sPL}:{sPL+1}], s[{sPL}:{sPL+1}], s[{sPL+2}:{sPL+3}]
s_or_b64 s[{sPL+4}:{sPL+5}], s[{sPL+4}:{sPL+5}], s[{sPL+6}:{sPL+7}]
s_or_b64 s[{sPL}:{sPL+1}], s[{sPL}:{sPL+1}], s[{sPL+4}:{sPL+5}]"""
        s.wlg(tag); spin(s, chk, pl(sOff), "lgkmcnt(0)"); return s
    def signal(vmtag, *offs):
        s = Stream()
        if vmtag: s.wvm(vmtag)
        for o in offs: s.e(f"s_atomic_swap s{sTAG}, s[26:27], s{o}", tag="sig")
        return s

    P = Stream()
    t0, t1, t2, t3 = va("t0"), va("t1"), va("t2"), va("t3")
    vDum = va("dum")
    vl3, vl7, vl4, vl5, vl16, vPair = [va(n) for n in "l3 l7 l4 l5 l16 pair".split()]
    vDX = [va(f"DX{q}") for q in range(4)]; vDW = [va(f"DW{q}") for q in range(4)]
    if diag: P.e(f"{smn} s[92:93]", tag="stamp")
    P.e("s_load_dwordx16 s[4:19], s[0:1], 0\ns_load_dwordx8 s[20:27], s[0:1], 64", tag="karg")
    P.e(f"""
v_lshrrev_b32 v{t0}, 6, v0
s_cmp_lt_u32 s2, 32
s_cbranch_scc1 HELPER
s_cmp_ge_u32 s2, 256
s_cbranch_scc1 END
v_readfirstlane_b32 s{sW}, v{t0}
v_and_b32 v0, 63, v0
s_sub_u32 s3, s2, 32
s_and_b32 s{sT0}, s3, 7
s_lshr_b32 s{sT1}, s3, 3
s_mul_i32 s{sT2}, s{sT1}, 37
s_lshr_b32 s{sT2}, s{sT2}, 8
s_mul_i32 s3, s{sT2}, 7
s_sub_u32 s{sCB}, s{sT1}, s3
s_lshr_b32 s{sR}, s{sT0}, 1
s_lshl_b32 s{sR}, s{sR}, 2
s_add_u32 s{sR}, s{sR}, s{sT2}
s_and_b32 s{sHALF}, s{sT0}, 1
v_lshrrev_b32 v{vl3}, 3, v0
v_and_b32 v{vl7}, 7, v0
v_lshrrev_b32 v{vl4}, 4, v0
v_mul_u32_u24 v{t3}, 896, v{vl3}
v_xor_b32 v{t1}, v{vl7}, v{vl4}
v_lshl_add_u32 v{vDX[0]}, v{t1}, 4, v{t3}
v_xor_b32 v{t1}, 4, v{t1}
v_lshl_add_u32 v{vDX[1]}, v{t1}, 4, v{t3}
v_add_u32 v{vDX[2]}, {2*6144}, v{vDX[0]}
v_add_u32 v{vDX[3]}, {3*6144}, v{vDX[1]}
v_add_u32 v{vDX[1]}, {6144}, v{vDX[1]}
v_mul_u32_u24 v{t0}, 3584, v{vl4}
v_and_b32 v{t1}, 15, v0
v_lshlrev_b32 v{t2}, 2, v{vl4}
v_xor_b32 v{t1}, v{t1}, v{t2}
v_lshl_add_u32 v{vDW[0]}, v{t1}, 4, v{t0}
v_add_u32 v{vDW[1]}, {4*3584-1024}, v{vDW[0]}
v_add_u32 v{vDW[2]}, {2*(4*3584-1024)}, v{vDW[0]}
v_add_u32 v{vDW[3]}, {3*(4*3584-1024)}, v{vDW[0]}
s_lshl_b32 s{sXo}, s{sR}, 2
s_add_u32 s{sXo}, s{sXo}, s{sW}
s_mul_i32 s{sXo}, s{sXo}, {32*896}
s_mul_i32 s{sWo}, s{sW}, {16*3584}
s_mul_i32 s{sT1}, s{sHALF}, 7
s_add_u32 s{sT1}, s{sT1}, s{sCB}
s_lshl_b32 s{sT1}, s{sT1}, 8
s_add_u32 s{sWo}, s{sWo}, s{sT1}
s_lshl_b32 s{sM0a}, s{sW}, 12""")
    rot = opt.get("rot", 1)
    if rot:
        if rot == 1: P.e(f"s_add_u32 s{sSt}, s{sR}, s{sCB}")
        elif rot in (4, 5):
            P.e(f"s_and_b32 s{sSt}, s{sCB}, 3\ns_add_u32 s{sSt}, s{sSt}, s{sT2}\ns_lshl_b32 s{sSt}, s{sSt}, 1")
            if rot == 5: P.e(f"s_lshr_b32 s3, s{sT0}, 1\ns_xor_b32 s3, s3, s{sT0}\ns_and_b32 s3, s3, 1\ns_add_u32 s{sSt}, s{sSt}, s3")
        elif rot == 8: P.e(f"s_lshl_b32 s{sSt}, s{sR}, 1\ns_add_u32 s{sSt}, s{sSt}, s{sCB}")
        P.e(f"""
s_mul_i32 s{sT1}, s{sSt}, 37
s_lshr_b32 s{sT1}, s{sT1}, 8
s_mul_i32 s{sT1}, s{sT1}, 7
s_sub_u32 s{sSt}, s{sSt}, s{sT1}
s_lshl_b32 s{sT1}, s{sSt}, 7
s_add_u32 s{sXo}, s{sXo}, s{sT1}
s_mul_i32 s{sT1}, s{sSt}, {64*3584}
s_add_u32 s{sWo}, s{sWo}, s{sT1}""")
    else:
        P.e(f"s_mov_b32 s{sSt}, 0")
    P.e(f"s_mov_b32 s{sX+2}, {XB}\ns_mov_b32 s{sX+3}, 0x20000\ns_mov_b32 s{sW1+2}, {WB}\ns_mov_b32 s{sW1+3}, 0x20000\ns_movk_i32 s{sXinc}, 128\ns_mov_b32 s{sWinc}, {64*3584}")
    def g1_dma(i):
        s = Stream(); sl = i % 3
        for q in range(4): s.dma(f"buffer_load_dwordx4 v{vDX[q]}, {srd(sX)}, s{sXo} offen offset:{q*1024} lds", (sM0a, sl*SLOT), f"g1d{i}")
        for q in range(4): s.dma(f"buffer_load_dwordx4 v{vDW[q]}, {srd(sW1)}, s{sWo} offen offset:{q*1024} lds", (sM0a, sl*SLOT+16384), f"g1d{i}")
        if i < 6:
            s.glue(f"""s_add_u32 s{sSt}, s{sSt}, 1
s_cmp_eq_u32 s{sSt}, 7
s_cselect_b32 s3, {(128-896) & 0xffffffff}, s{sXinc}
s_add_u32 s{sXo}, s{sXo}, s3
s_cmp_eq_u32 s{sSt}, 7
s_cselect_b32 s3, {(64*3584-448*3584) & 0xffffffff}, s{sWinc}
s_add_u32 s{sWo}, s{sWo}, s3""")
        return s
    P.wlg("karg")
    P.e(f"s_mov_b64 s[{sX}:{sX+1}], s[4:5]\ns_mov_b64 s[{sW1}:{sW1+1}], s[18:19]")
    if opt.get("burst"):
        nb = opt["burst"]
        P.e(f"s_lshl_b32 s3, s2, 2\ns_add_u32 s3, s3, s{sW}\ns_mul_i32 s3, s3, {nb*1024}\ns_add_u32 s3, s3, 0x4000000\nv_lshlrev_b32 v{t0}, 4, v0\nv_add_u32 v{t0}, s3, v{t0}")
        for i in range(nb):
            P.e(f"global_load_dwordx4 v[{128+4*(i%16)}:{131+4*(i%16)}], v{t0}, s[26:27]\nv_add_u32 v{t0}, 1024, v{t0}", tag="burst")
        P.wvm("burst")
    P += g1_dma(0)
    P.e(f"s_load_dword s{sTAG}, s[26:27], 0", tag="etag")
    d1 = list(g1_dma(1)); n1 = opt.get("d1pre", 3)
    P += d1[:n1]; d1 = d1[n1:]
    for n, p, size in ((sK, 6, XB), (sV, 8, XB), (sW2, 20, WB), (sH, 12, XB), (sWS, 26, WS_END), (sO, 22, XB)):
        P.e(f"s_mov_b64 s[{n}:{n+1}], s[{p}:{p+1}]\ns_mov_b32 s{n+2}, {size}\ns_mov_b32 s{n+3}, 0x20000")
    if diag: P.e("s_mov_b32 s4, s92")
    stamp(P, "iss0")
    vr_, vlo = RA, RA + 1
    vP0, vP1, vPh, vTa, vTa4 = [va(n) for n in "P0 P1 Ph Ta Ta4".split()]
    sP0o, sP0m, sHal = sa("P0o"), sa("P0m"), sa("Hal")
    P.e(f"""
s_lshl_b32 s{sRB}, s{sR}, 1
s_add_u32 s{sRB}, s{sRB}, s{sHALF}
s_lshl_b32 s{sM0b}, s{sW}, 13
v_lshl_add_u32 v{vP0}, v{vl7}, 4, v{t3}
v_add_u32 v{vP1}, {7168-1040}, v{vP0}
s_lshl_b32 s{sP0o}, s{sRB}, 2
s_add_u32 s{sP0o}, s{sP0o}, s{sW}
s_mul_i32 s{sP0o}, s{sP0o}, {16*896}
s_lshl_b32 s{sT1}, s{sCB}, 7
s_add_u32 s{sP0o}, s{sP0o}, s{sT1}
s_mul_i32 s{sP0m}, s{sW}, 2080
s_cmp_eq_u32 s{sRB}, 0
s_cselect_b32 s{sT1}, 0x40000000, 0
s_cselect_b32 s{sHal}, 0, 7168
s_sub_u32 s{sHal}, s{sP0o}, s{sHal}
s_mul_i32 s3, s{sW}, {16*896}
s_sub_u32 s{sHal}, s{sHal}, s3
v_add_u32 v{vPh}, s{sT1}, v{vP0}
s_lshl_b32 s{sT1}, s{sW}, 3
v_add_u32 v{vPair}, s{sT1}, v{vl3}
s_lshl_b32 s{sT1}, s{sCB}, 5
v_add_lshl_u32 v{vTa}, v{vPair}, s{sT1}, 2
v_lshlrev_b32 v{vTa4}, 2, v{vTa}
v_lshlrev_b32 v{vl16}, 4, v0""")
    vXA = [[va(f"XA{h}{k}") for k in range(4)] for h in range(2)]
    vXB = [[va(f"XB{h}{k}") for k in range(4)] for h in range(2)]
    vWA = [[va(f"WA{h}{k}") for k in range(2)] for h in range(2)]
    vSel = va("sel", 4, 4); vZero = va("zero", 4, 4)
    P.e(f"""
v_lshrrev_b32 v{vl5}, 5, v0
v_and_b32 v{t0}, 31, v0
v_lshl_add_u32 v{t0}, v{t0}, 7, s{sM0a}
v_bfe_u32 v{t1}, v0, 1, 3
v_xor_b32 v{t1}, v{t1}, v{vl5}""")
    for k in range(4):
        P.e(f"""
v_xor_b32 v{t3}, {2*k}, v{t1}
v_lshl_add_u32 v{vXA[0][k]}, v{t3}, 4, v{t0}
v_xor_b32 v{vXB[0][k]}, 0x1000, v{vXA[0][k]}
v_add_u32 v{vXA[1][k]}, 0x10000, v{vXA[0][k]}
v_add_u32 v{vXB[1][k]}, 0x10000, v{vXB[0][k]}""")
    vEW, vER, vER2, vEC = [va(n) for n in "EW ER ER2 EC".split()]
    P.e(f"""
v_bfe_u32 v{vr_}, v0, 2, 2
v_and_b32 v{t0}, 3, v0
v_lshlrev_b32 v{vlo}, 3, v{t0}
v_and_b32 v{t0}, 16, v0
v_lshl_add_u32 v{vlo}, v{t0}, 1, v{vlo}
v_lshl_add_u32 v{t0}, v{vl5}, 3, v{vr_}
v_lshl_add_u32 v{t0}, v{t0}, 8, v{vlo}
v_add_u32 v{t0}, 16384, v{t0}
s_and_b32 s{sT0}, s{sW}, 1
s_lshl_b32 s{sT0}, s{sT0}, 1
s_lshr_b32 s{sT1}, s{sW}, 1
s_add_u32 s{sT0}, s{sT0}, s{sT1}
v_xor_b32 v{t1}, s{sT0}, v{vr_}
v_lshl_add_u32 v{vWA[0][0]}, v{t1}, 6, v{t0}
v_xor_b32 v{vWA[0][1]}, 64, v{vWA[0][0]}
v_add_u32 v{vWA[1][0]}, 0x10000, v{vWA[0][0]}
v_add_u32 v{vWA[1][1]}, 0x10000, v{vWA[0][1]}
v_lshrrev_b32 v{t0}, 2, v0
v_xor_b32 v{t0}, v{t0}, v{vl4}
v_and_b32 v{t0}, 1, v{t0}
v_cmp_eq_u32 vcc, 0, v{t0}
v_mov_b32 v{t1}, 0x3f803f80
v_mov_b32 v{vZero}, 0
v_cndmask_b32 v{vSel}, 0, v{t1}, vcc
v_mov_b32 v{vZero+1}, 0
v_mov_b32 v{vZero+2}, 0
v_mov_b32 v{vZero+3}, 0
v_mov_b32 v{vSel+1}, v{vSel}
v_mov_b32 v{vSel+2}, v{vSel}
v_mov_b32 v{vSel+3}, v{vSel}
v_and_b32 v{t0}, 31, v0
v_lshlrev_b32 v{t0}, 3, v{t0}
s_lshl_b32 s{sT0}, s{sT0}, 8
s_add_u32 s{sT0}, s{sT0}, {L_EXC}
v_add_u32 v{vEC}, s{sT0}, v{t0}
s_lshl_b32 s{sT1}, s{sW}, 8
s_add_u32 s{sT1}, s{sT1}, {L_EX}
v_add_u32 v{vER}, s{sT1}, v{t0}
v_cmp_gt_u32 vcc, 32, v0
v_mov_b32 v{t1}, {L_EXZ}
v_xor_b32 v{vER2}, 256, v{vER}
v_cndmask_b32 v{vEW}, v{vEC}, v{vER}, vcc
v_cndmask_b32 v{vER}, v{t1}, v{vER}, vcc
v_cndmask_b32 v{vER2}, v{t1}, v{vER2}, vcc""")
    P.e(f"ds_write_b64 v{t1}, {vr(vZero,2)}", tag="exz")
    vK0, vK1, vKV = va("K0"), va("K1"), va("KV")
    sKVo, sF0w, sF0r, sF1w, sF1x, sF1r, sHst, sHo, sHo2, sW2o, sCHo, sCAh, sCAo, sCAm, sUo = [sa(n) for n in "KVo F0w F0r F1w F1x F1r Hst Ho Ho2 W2o CHo CAh CAo CAm Uo".split()]
    vHS = [va("HS0"), va("HS1")]
    P.e(f"""
v_mul_u32_u24 v{t0}, 1040, v{vl7}
v_lshl_add_u32 v{vK0}, v{vPair}, 2, v{t0}
v_add_u32 v{vK0}, {P0K}, v{vK0}
v_add_u32 v{vK1}, 1040, v{vK0}
v_mul_u32_u24 v{t0}, 12288, v{vPair}
v_lshl_add_u32 v{vKV}, v{vl7}, 4, v{t0}
s_mul_i32 s{sKVo}, s{sCB}, {32*12288}
s_mul_i32 s{sT0}, s{sRB}, 384
s_add_u32 s{sKVo}, s{sKVo}, s{sT0}
s_add_u32 s{sKVo}, s{sKVo}, {WS_KVT}
s_lshr_b32 s{sT0}, s{sRB}, 3
s_lshl_b32 s{sT1}, s{sCB}, 2
s_add_u32 s{sF0w}, s{sT1}, s{sT0}
s_lshl_b32 s{sF0w}, s{sF0w}, 2
s_add_u32 s{sF0w}, s{sF0w}, s{sW}
s_lshl_b32 s{sF0w}, s{sF0w}, 5
s_and_b32 s{sT2}, s{sRB}, 7
s_add_u32 s{sF0w}, s{sF0w}, s{sT2}
s_lshl_b32 s{sF0w}, s{sF0w}, 2
s_add_u32 s{sF0w}, s{sF0w}, {MB0}
s_sub_u32 s{sT2}, 3, s{sW}
s_add_u32 s{sF0r}, s{sT1}, s{sT2}
s_lshl_b32 s{sF0r}, s{sF0r}, 2
s_add_u32 s{sF0r}, s{sF0r}, s{sT0}
s_lshl_b32 s{sF0r}, s{sF0r}, 7
s_add_u32 s{sF0r}, s{sF0r}, {MB0}
s_lshl_b32 s{sF1r}, s{sRB}, 9
s_add_u32 s{sF1r}, s{sF1r}, {MB1}""")
    P.e(f"""
s_mul_i32 s{sHo2}, s{sRB}, 229376
s_add_u32 s{sHo2}, s{sHo2}, {WS_H}
s_lshr_b32 s{sT0}, s{sW}, 1
s_and_b32 s{sT1}, s{sW}, 1
s_lshl_b32 s{sT2}, s{sCB}, 1
s_add_u32 s{sT2}, s{sT2}, s{sT1}
s_mul_i32 s{sHst}, s{sT0}, {2*57344}
s_add_u32 s{sHst}, s{sHst}, s{sHo2}
s_lshl_b32 s3, s{sT2}, 12
s_add_u32 s{sHst}, s{sHst}, s3
s_lshl_b32 s3, s{sT0}, 11
v_add_u32 v{t0}, s3, v{vl16}
s_mul_i32 s3, s{sT1}, 57344
v_add_u32 v{vHS[0]}, s3, v{t0}
s_sub_u32 s3, 57344, s3
v_add_u32 v{vHS[1]}, s3, v{t0}""")
    for dst, add in ((sF1w, 0), (sF1x, 1)):
        P.e(f"""
s_lshl_b32 s3, s{sT2}, 1
s_add_u32 s3, s3, {add}
s_mul_i32 s3, s3, 37
s_lshr_b32 s3, s3, 8
s_lshl_b32 s{dst}, s3, 7
s_add_u32 s{dst}, s{dst}, s{sF1r}
s_mul_i32 s3, s3, 7
s_lshr_b32 s3, s3, 1
s_sub_u32 s3, s{sT2}, s3
s_lshl_b32 s3, s3, 1
s_add_u32 s3, s3, s{sT0}
s_lshl_b32 s3, s3, 2
s_add_u32 s{dst}, s{dst}, s3""")
    vD2 = [va(f"D2{q}") for q in range(4)]; vW2A = [[va(f"W2A{h}{d}") for d in range(2)] for h in range(3)]
    vCAw, vCAg, vCA, vCB, vUW, vUZ, vUX = [va(n) for n in "CAw CAg CA CB UW UZ UX".split()]
    P.e(f"""
s_lshl_b32 s3, s{sW}, 7
s_add_u32 s{sF1r}, s{sF1r}, s3
s_mul_i32 s3, s{sW}, 14336
s_add_u32 s{sHo2}, s{sHo2}, s3
s_mul_i32 s3, s{sHALF}, {2*57344}
s_sub_u32 s{sHo}, s{sHo2}, s3
s_add_u32 s{sHo}, s{sHo}, {2*57344}
s_add_u32 s{sHo2}, s{sHo2}, s3
v_and_b32 v{t1}, 16, v0
v_lshlrev_b32 v{t1}, 2, v{t1}
v_xor_b32 v{vD2[0]}, v{t1}, v{vP0}
v_add_u32 v{vD2[1]}, 6144, v{vD2[0]}
v_add_u32 v{vD2[2]}, {2*6144}, v{vD2[0]}
v_add_u32 v{vD2[3]}, {3*6144}, v{vD2[0]}
s_lshl_b32 s{sW2o}, s{sHALF}, 2
s_add_u32 s{sW2o}, s{sW2o}, s{sW}
s_mul_i32 s{sW2o}, s{sW2o}, {224*896}
s_lshl_b32 s{sT2}, s{sCB}, 7
s_add_u32 s{sW2o}, s{sW2o}, s{sT2}
v_lshl_add_u32 v{t0}, v{vl5}, 2, v{vr_}
v_lshl_add_u32 v{t0}, v{t0}, 7, v{vlo}
v_add_u32 v{t0}, s{sM0b}, v{t0}
v_lshrrev_b32 v{t1}, 1, v{vr_}
v_lshl_add_u32 v{vW2A[0][0]}, v{t1}, 6, v{t0}
v_xor_b32 v{vW2A[0][1]}, 64, v{vW2A[0][0]}
v_add_u32 v{vW2A[1][0]}, 0x10000, v{vW2A[0][0]}
v_add_u32 v{vW2A[1][1]}, 0x10000, v{vW2A[0][1]}
s_sub_u32 s3, {CB}, s{sM0a}
v_add_u32 v{vW2A[2][0]}, s3, v{vW2A[0][0]}
v_add_u32 v{vW2A[2][1]}, s3, v{vW2A[0][1]}
s_lshl_b32 s{sCHo}, s{sCB}, 5
s_add_u32 s{sCHo}, s{sCHo}, s{sRB}
s_lshl_b32 s{sCHo}, s{sCHo}, 13
s_lshl_b32 s{sCAh}, s{sT0}, 12
s_add_u32 s{sCAh}, s{sCAh}, s{sCHo}
s_lshl_b32 s3, s{sT1}, 3
s_add_u32 s{sCAo}, s{sCAh}, s3
s_add_u32 s{sCAo}, s{sCAo}, 4
s_mul_i32 s{sCAm}, s{sW}, 8320
s_mul_i32 s{sT2}, s{sT0}, 16640
s_add_u32 s{sT2}, s{sT2}, {CA}
v_and_b32 v{t0}, 15, v0
v_mul_u32_u24 v{t1}, 1040, v{vl4}
v_add_lshl_u32 v{vCAw}, v{t0}, v{t1}, 2
v_add_u32 v{vCAw}, s{sT2}, v{vCAw}
v_add3_u32 v{t0}, v{t0}, v{vl4}, -15
v_lshlrev_b32 v{t1}, 2, v{t0}
v_lshrrev_b32 v{t0}, 1, v{t0}
v_and_b32 v{t0}, 0x40000000, v{t0}
v_and_or_b32 v{vCAg}, v{t1}, 63, v{t0}
v_and_b32 v{t0}, 3, v0
v_mul_u32_u24 v{t0}, 4160, v{t0}
v_add_u32 v{t1}, v{vr_}, v{vl4}
v_lshl_add_u32 v{t0}, v{t1}, 4, v{t0}
s_lshl_b32 s3, s{sT1}, 8
s_add_u32 s{sT2}, s{sT2}, s3
v_add_u32 v{vCA}, s{sT2}, v{t0}
v_and_b32 v{t0}, 1, v0
v_mul_u32_u24 v{t0}, 4576, v{t0}
v_bfe_u32 v{t1}, v0, 1, 3
v_lshlrev_b32 v{t1}, 2, v{t1}
v_sub_u32 v{t1}, v{vl4}, v{t1}
v_lshl_add_u32 v{t0}, v{t1}, 4, v{t0}
s_mul_i32 s{sT2}, s{sT0}, 9152
s_add_u32 s{sT2}, s{sT2}, s3
s_add_u32 s{sT2}, s{sT2}, {CB + 28*16}
v_add_u32 v{vCB}, s{sT2}, v{t0}
s_lshr_b32 s{sUo}, s{sCHo}, 13
s_mul_i32 s{sUo}, s{sUo}, 12288
s_add_u32 s{sUo}, s{sUo}, {WS_KVT}
s_lshl_b32 s3, s{sW}, 10
s_add_u32 s3, s3, {CB}
v_add_u32 v{vUW}, s3, v{vl16}
v_min_u32 v{t0}, 29, v0
s_mul_i32 s3, s{sW}, 4576
s_add_u32 s3, s3, {CB + 4096}
v_lshl_add_u32 v{vUZ}, v{t0}, 4, s3
v_sub_u32 v{t0}, 31, v{vPair}
v_mul_u32_u24 v{t0}, 384, v{t0}
v_sub_u32 v{t1}, 7, v{vl7}
v_lshl_add_u32 v{vUX}, v{t1}, 4, v{t0}""")
    stamp(P, "su")
    P.wlg("etag")
    P.e(f"s_mul_i32 s{sTAG}, s{sTAG}, {LCG_A}\ns_add_u32 s{sTAG}, s{sTAG}, {LCG_C}\ns_mov_b32 s{sTAG+1}, s{sTAG}")

    vTap = va("tap", 4, 4); vKVf = va("KVf", 16); vU = RA + 40
    vHd = vTap + 2
    def tagchk(regs):
        pr = ["vcc"] + [f"s[{sPL+2*k}:{sPL+2*k+1}]" for k in range(4)] + [f"s[{sT0}:{sT1}]"]
        t = "\n".join(f"v_cmp_ne_u32 {pr[k]}, s{sTAG}, v{r}" for k, r in enumerate(regs))
        return t + "\n" + "\n".join(f"s_or_b64 vcc, vcc, {pr[k]}" for k in range(1, len(regs)))
    acc = RB_; sacc = RC; hp = RA; us = RA + 32
    NB = 4; fb = 160
    def p0_loads():
        s = Stream()
        s.e(f"global_load_dwordx4 {vr(vTap,4)}, v{vTa4}, s[10:11]", tag="p0")
        out = [s]
        for n_, (sr, base) in enumerate(((sK, P0K), (sV, P0V))):
            s = Stream()
            s.glue(f"s_cmp_lg_u32 s{sW}, {n_}\ns_cbranch_scc1 NOHALO{n_}\ns_mov_b32 m0, {base}")
            s[-1].append(I(f"buffer_load_dwordx4 v{vPh}, {srd(sr)}, s{sHal} offen lds", kind="cond"))
            s[-1].append(I(f"NOHALO{n_}:"))
            s.dma(f"buffer_load_dwordx4 v{vP0}, {srd(sr)}, s{sP0o} offen lds", (sP0m, base + 1040), "p0")
            s.dma(f"buffer_load_dwordx4 v{vP1}, {srd(sr)}, s{sP0o} offen offset:1040 lds", (sP0m, base + 1040), "p0")
            out.append(s)
        return list(out[0]) + list(out[1]), list(out[2])
    def phase0(tmp):
        kf = tmp; kraw = tmp + 24; vraw = tmp + 36; tf = tmp + 46; am = tmp + 54; pk = tmp + 24
        a0 = vKVf
        areg = lambda i: am if i < 0 else a0 + 2 * i
        Z = Stream()
        Z.e(f"ds_read2_b32 {vr(kraw,2)}, v{vK0} offset0:128 offset1:160\nds_read2_b32 {vr(kraw+2,2)}, v{vK0} offset0:192 offset1:224", tag="k")
        for i in range(4): Z.e(f"ds_read2_b32 {vr(kraw+4+2*i,2)}, v{vK1} offset0:{64*i} offset1:{64*i+32}", tag="k")
        Z.e(f"v_add_u32 v{vK1}, {P0V-P0K}, v{vK1}")
        Z.e(f"ds_read_b32 v{vraw+8}, v{vK0} offset:{P0V-P0K+896}", tag="v")
        for i in range(4): Z.e(f"ds_read2_b32 {vr(vraw+2*i,2)}, v{vK1} offset0:{64*i} offset1:{64*i+32}", tag="v")
        Y = Stream()
        for c in range(2):
            for h in range(2):
                Y.e(f"v_lshlrev_b32 v{tf+2*(2*h)+c}, 16, v{vTap+2*c+h}\nv_and_b32 v{tf+2*(2*h+1)+c}, 0xffff0000, v{vTap+2*c+h}")
        Y.wlg("k")
        for i in range(12):
            Y.e(f"v_lshlrev_b32 v{kf+2*i}, 16, v{kraw+i}\nv_and_b32 v{kf+2*i+1}, 0xffff0000, v{kraw+i}")
        Y.wlg("v")
        W = Stream()
        for i in range(-1, 8): W.e(f"v_pk_mul_f32 {vr(areg(i),2)}, {vr(kf+2*(i+1),2)}, {vr(tf+6,2)}")
        for t in (2, 1, 0):
            for i in range(-1, 8): W.e(f"v_pk_fma_f32 {vr(areg(i),2)}, {vr(kf+2*(i+4-t),2)}, {vr(tf+2*t,2)}, {vr(areg(i),2)}")
        X2 = Stream()
        for i in range(-1, 8):
            vv = vraw + (8 if i < 0 else i)
            X2.e(f"""v_lshlrev_b32 v{kf+2*(i+1)}, 16, v{vv}
v_and_b32 v{kf+2*(i+1)+1}, 0xffff0000, v{vv}
v_mul_f32 v{areg(i)}, v{areg(i)}, v{kf+2*(i+1)}
v_mul_f32 v{areg(i)+1}, v{areg(i)+1}, v{kf+2*(i+1)+1}""")
        for k in range(3): X2.e(f"v_mov_b32 v{pk+4*k+3}, s{sTAG}")
        for c in range(2):
            for d in range(4):
                dst = pk + 4*c + d if d < 3 else pk + 8 + c
                X2.e(f"v_cvt_pk_bf16_f32 v{dst}, v{a0+2*(7-2*d)+c}, v{a0+2*(6-2*d)+c}")
        X2.e(f"v_cvt_pk_bf16_f32 v{pk+10}, v{am}, v{am+1}")
        for k in range(3): X2.e(f"buffer_store_dwordx4 {vr(pk+4*k,4)}, v{vKV}, {srd(sWS)}, s{sKVo} offen offset:{k*128} sc1", tag="p0st")
        return Z, Y, W, X2
    def g1_reads(kap):
        i, ks = divmod(kap, 4)
        s = Stream(); sl = i % 3; h = 1 if sl == 2 else 0; base = sl * SLOT if sl < 2 else 0
        b = fb + 16 * (kap % NB); tg = f"fr{kap}"
        s.e(f"ds_read_b128 {ar(b,4)}, v{vXA[h][ks]} offset:{base}", tag=tg)
        for hh in range(2): s.e(f"ds_read_b64_tr_b16 {ar(b+8+2*hh,2)}, v{vWA[h][0]} offset:{base+ks*4096+hh*1024}", tag=tg)
        s.e(f"ds_read_b128 {ar(b+4,4)}, v{vXB[h][ks]} offset:{base}", tag=tg)
        for hh in range(2): s.e(f"ds_read_b64_tr_b16 {ar(b+12+2*hh,2)}, v{vWA[h][1]} offset:{base+ks*4096+hh*1024}", tag=tg)
        return s
    TILES = ((0, 0), (0, 1), (1, 0), (1, 1))
    def mf(kap, f, st):
        b = fb + 16 * (kap % NB); a = acc + (2*f+st)*16
        return f"v_mfma_f32_32x32x16_bf16 {vr(a,16)}, {ar(b+8+4*f,4)}, {ar(b+4*st,4)}, {'0' if kap == 0 else vr(a,16)}"
    def ms(kap, which):
        b = fb + 16 * (kap % NB); a = sacc + 4 * which
        return f"v_mfma_f32_16x16x32_bf16 {vr(a,4)}, {vr(vSel,4)}, {ar(b+8*which,4)}, {'0' if kap == 0 else vr(a,4)}"
    W2B = [None, SLOT, SLOT + 4096, 2*SLOT, 2*SLOT + 4096, 0, 4096]
    def w2_dma(g):
        s = Stream()
        m0 = (sM0a, CB) if g == 0 else (sM0b, W2B[g])
        for q in range(4): s.dma(f"buffer_load_dwordx4 v{vD2[q]}, {srd(sW2)}, s{sW2o} offen offset:{q*1024} lds", m0, f"w2d{g}")
        if g < 6: s.e(f"s_add_u32 s{sW2o}, s{sW2o}, {32*896}")
        return s
    def w2_read(g):
        s = Stream()
        if g == 0: regs, b = vW2A[2], 0
        else:
            b = W2B[g]; h = 1 if b >= 65536 else 0; b -= h * 65536; regs = vW2A[h]
        s.wvm(f"w2d{g}")
        for kbl in range(2):
            for dt in range(2):
                a = ((2*g + kbl) * 2 + dt) * 4
                for hh in range(2):
                    s.e(f"ds_read_b64_tr_b16 {ar(a+2*hh,2)}, v{regs[dt]} offset:{b + kbl*2048 + hh*1024}", tag=f"w2r{g}")
        return s
    def convA_load():
        s = Stream()
        s.e(f"buffer_load_dword v{vHd}, v{vCAg}, {srd(sH)}, s{sCAh} offen", tag="ca")
        for c in range(2):
            for q in range(4): s.dma(f"buffer_load_dwordx4 v{vl16}, {srd(sH)}, s{sCAo} offen offset:{q*1024} lds", (sCAm, CA + 64 + c*4160), "ca")
            if c == 0: s.e(f"s_add_u32 s{sCAo}, s{sCAo}, 4")
        return s
    ul = "\n".join(f"buffer_load_dwordx4 {vr(vU+4*k,4)}, v{vUX}, {srd(sWS)}, s{sUo} offen offset:{k*128} sc1" for k in range(3))

    Q = []
    def q(items, e, d=None):
        for x in items: Q.append((x, e, d))
    P.wlg("ALL"); P.wvm("g1d0"); stamp(P, "d0land"); P += d1; P.e("s_barrier")
    stamp(P, "g1go")
    head = P; P = Stream()
    P += g1_reads(0); P += g1_reads(1)
    Z, Y, W, X2 = phase0(RA)
    kp = 4 * p0pos + 2
    for kap in range(24):
        i, ks = divmod(kap, 4)
        if ks == 2:
            P.append(mark(f"pb{i}"))
            P.wlg("LDS"); P.wvm(f"g1d{i+1}")
            if i == p0pos: P.wvm("p0")
            P.e("s_barrier")
            stamp(P, f"g1b_{i}")
        P.append(mark(f"k{kap}"))
        if kap == opt.get("sig0", kp + 5): P += signal(opt.get("sig0w"), sF0w)
        if kap == opt.get("poll0", 21): poll_issue(P, sF0r, "poll0")
        if kap == kp + 2: P += W
        P.wlg(f"fr{kap}")
        M = Stream()
        for (f, st) in TILES:
            M.e(mf(kap, f, st))
            if (f, st) == (0, 0): M.e(ms(kap, 0))
            if (f, st) == (1, 0): M.e(ms(kap, 1))
        fill = [(g1_reads(kap + 2), 0, 6 if ks != 1 else 4)]
        if kap == kp: fill = [(Z, 0, 3), (g1_reads(kap + 2), 3, 6), (Y[:12], 3, 6)]
        if kap == kp + 1: fill.append(Y[12:])
        if kap == kp + 2: fill.append(X2[:26])
        if kap == kp + 3: fill.append(X2[26:])
        P += merge(M, *fill)
    P.append(mark("k24"))
    P.wlg("fr24")
    M = Stream()
    for (f, st) in TILES:
        M.e(mf(24, f, st))
        if (f, st) == (0, 0): M.e(ms(24, 0))
        if (f, st) == (1, 0): M.e(ms(24, 1))
    P += merge(M, (list(g1_reads(26)) + list(g1_reads(27)), 0, 5))
    P.wlg("fr25"); P.e(ms(25, 0) + "\n" + ms(25, 1))
    P.wlg("fr26"); P.e(ms(26, 0) + "\n" + ms(26, 1))
    P.wlg("fr27"); P.e(ms(27, 0) + "\n" + ms(27, 1))
    ex = fb + 16 * (24 % NB)
    X = Stream()
    for r in (2, 3, 6, 7): X.e(f"v_accvgpr_write_b32 a{ex+r}, 0")
    X.e(f"""
v_cmp_gt_u32 vcc, 32, v0
v_mul_f32 v{t0}, {-1.0/448!r}, v{sacc}
v_and_b32 v{t2}, 0xffff0000, v{sacc+4}
v_cvt_pk_bf16_f32 v{t0}, v{t0}, v{t0}
v_sub_f32 v{t3}, v{sacc+4}, v{t2}
v_and_b32 v{t1}, 0xffff, v{t0}
v_and_b32 v{sacc}, 0xffff0000, v{t3}
v_sub_f32 v{t3}, v{t3}, v{sacc}
v_lshrrev_b32 v{t2}, 16, v{t2}
v_or_b32 v{t2}, v{t2}, v{sacc}
v_lshrrev_b32 v{t3}, 16, v{t3}
v_cndmask_b32 v{sacc+2}, v{t2}, v{t0}, vcc
v_cndmask_b32 v{sacc+3}, v{t3}, v{t1}, vcc""")
    X.e(f"ds_write_b64 v{vEW}, {vr(sacc+2,2)}", tag="exw")
    for r in (10, 11, 14, 15): X.e(f"v_accvgpr_write_b32 a{ex+r}, 0")
    X.e(f"v_xor_b32 v{t1}, 256, v{vEC}")
    M = Stream()
    for (f, st) in TILES: M.e(mf(25, f, st))
    P += merge(M, X)
    P.append(mark("pb6"))
    stamp(P, "prepoll")
    P.wlg("LDS"); P.e("s_barrier")
    stamp(P, "g1b_6")
    P.e(f"ds_read_b64 {ar(ex,2)}, v{vER}\nds_read_b64 {ar(ex+8,2)}, v{vEC}\nds_read_b64 {ar(ex+4,2)}, v{vER2}\nds_read_b64 {ar(ex+12,2)}, v{t1}", tag="exr")
    P.append(mark("k26"))
    def epi(n):
        f, st = TILES[n]
        s = Stream(); a = acc + (2*f+st)*16; o = hp + 8 * n
        for r in range(8): s.e(f"v_cvt_pk_bf16_f32 v{o+r}, v{a+2*r}, v{a+2*r+1}")
        for r in range(8): s.e(f"v_pk_max_i16 v{o+r}, v{o+r}, 0")
        s.append(mark(f"e{n}"))
        return s
    def hstore(n):
        f, st = TILES[n]; s = Stream()
        if n == 2: s.e(f"v_xor_b32 v{vHS[0]}, 0x800, v{vHS[0]}\nv_xor_b32 v{vHS[1]}, 0x800, v{vHS[1]}")
        for e in range(2): s.e(f"buffer_store_dwordx4 {vr(hp+8*n+4*e,4)}, v{vHS[st]}, {srd(sWS)}, s{sHst} offen offset:{e*1024} sc1", tag="hst")
        return s
    T = TILES
    M = Stream()
    M.e(mf(26, *T[0]) + "\n" + mf(27, *T[0]) + "\n" + mf(26, *T[1]))
    M.wlg("exr")
    M.e(mf(24, *T[0]) + "\n" + mf(27, *T[1]) + "\n" + mf(24, *T[1]))
    for t in (2, 3): M.e(mf(26, *T[t]) + "\n" + mf(27, *T[t]) + "\n" + mf(24, *T[t]))
    US = Stream()
    US.e(f"ds_write_b128 v{vUZ}, {vr(vZero,4)}", tag="uw")
    US.wvm("u", "ca")
    spin(US, tagchk([vU+3, vU+7, vU+11]), ul, "vmcnt(0)")
    US.e(f"v_mov_b32 v{vU+3}, v{vU+8}\nv_mov_b32 v{vU+7}, v{vU+9}\nv_lshrrev_b32 v{vU+11}, 16, v{vU+10}")
    US.e(f"ds_write_b32 v{vCAw}, v{vHd}\nds_write_b128 v{vUW}, {vr(vU,4)} offset:4576\nds_write_b128 v{vUW}, {vr(vU+4,4)} offset:{9152+4576}", tag="uw")
    for c in range(2):
        for d in range(3): US.e(f"v_alignbyte_b32 v{us+4*c+d}, v{vU+4*c+d+1}, v{vU+4*c+d}, 2")
        US.e(f"v_alignbyte_b32 v{us+4*c+3}, v{vU+10+c}, v{vU+4*c+3}, 2")
        US.e(f"ds_write_b128 v{vUW}, {vr(us+4*c,4)} offset:{9152*c}", tag="uw")
    P += merge(M, (US, 0, 5), (epi(0), 5, 8), (epi(1), 8, 10), (epi(2), 10, 12))
    stamp(P, "g1done")
    P.wlg("uw"); P.e("s_barrier")

    cacc = 224
    cfr = lambda s_, k: (ar(112 + 4*k, 4) if s_ % 2 == 0 else vr(RB_ + 4*k, 4))
    def conv_reads(s_):
        s = Stream()
        for i in range(8):
            s.e(f"ds_read_b128 {cfr(s_, i)}, v{vCA} offset:{i*512 + s_*64}", tag=f"cA{s_}_{i}")
            s.e(f"ds_read_b128 {cfr(s_, 8+i)}, v{vCB} offset:{(7-i)*512 + s_*64}", tag=f"cB{s_}_{i}")
        return s
    def conv_mfma(s_):
        s = Stream(); done = set(); k = 36 * s_
        for n in range(8):
            s.wlg(f"cA{s_}_{n}", f"cB{s_}_{n}")
            prods = [(i, r) for i in range(n + 1) for r in range(n + 1) if i + r <= 7 and (i, r) not in done]
            prods.sort(key=lambda p: (min(p), p))
            for (i, r) in prods:
                done.add((i, r)); t = cacc + 4 * (i + r)
                first = (s_ == 0 and not any((a + c == i + r) and (a, c) != (i, r) for (a, c) in done))
                if k % 6 == 0: s.append(mark(f"c{k}"))
                s.e(f"v_mfma_f32_16x16x32_bf16 {ar(t,4)}, {cfr(s_, i)}, {cfr(s_, 8+r)}, {'0' if first else ar(t,4)}")
                k += 1
        return s
    for h in range(2):
        for k in range(4): V.release(f"XA{h}{k}", f"XB{h}{k}")
        for k in range(2): V.release(f"WA{h}{k}")
    for k in range(4): V.release(f"DX{k}", f"DW{k}")
    V.release("sel", "EW", "ER", "ER2", "EC", "K0", "K1", "P0", "P1", "Ph", "Ta4", "CAw", "CAg", "UW", "UZ", "UX", "tap", "W2A20", "W2A21")
    vGS = va("GS", 24, 4); vS2 = va("S2", 8, 2)
    vGW = [va(f"GW{k}") for k in range(4)]; vGR, vGR2, vAW, vAR, vOut, vCW, vCR, vYS, vRA = [va(n) for n in "GR GR2 AW AR out CW CR YS RA".split()]
    vYA = vKV
    vRT = va("rt", 4, 2); vDd = va("Dd")
    vXr = RA + 48 + 8
    vXc = RC
    sYst, sYld, sOo, sRTo, sOo2, sPXw, sPXr, sF2w, sF2r, sF3w, sF3r = sXo, sWo, sSt, sHal, sP0o, sXinc, sWinc, sF0w, sF0r, sCAh, sCAo
    TS = Stream()
    TS.e(f"""
v_mul_u32_u24 v{t0}, 896, v{vPair}
v_lshl_add_u32 v{vOut}, v{vl7}, 4, v{t0}
v_lshlrev_b32 v{vRA}, 3, v{vPair}
s_lshl_b32 s{sRTo}, s{sRB}, 9
s_add_u32 s{sRTo}, s{sRTo}, {WS_RT}
s_mul_i32 s{sOo}, s{sRB}, {64*896}
s_lshl_b32 s{sT1}, s{sCB}, 7
s_add_u32 s{sOo}, s{sOo}, s{sT1}
s_add_u32 s{sOo2}, s{sOo}, {32*896}
v_and_b32 v{t0}, 15, v0
v_lshlrev_b32 v{t1}, 2, v{vl4}
v_xor_b32 v{t0}, v{t0}, v{t1}
v_lshlrev_b32 v{t0}, 4, v{t0}
v_lshl_add_u32 v{t0}, v{vl4}, 8, v{t0}
s_add_u32 s{sT0}, s{sM0b}, {CA}
v_add_u32 v{vCW}, s{sT0}, v{t0}
v_and_b32 v{t1}, 3, v0
v_bfe_u32 v{t2}, v0, 2, 3
v_lshlrev_b32 v{t2}, 1, v{t2}
v_lshlrev_b32 v{t3}, 2, v{t1}
v_xor_b32 v{t2}, v{t2}, v{t3}
v_lshlrev_b32 v{t2}, 4, v{t2}
v_lshl_add_u32 v{t2}, v{t1}, 8, v{t2}
v_lshl_add_u32 v{t2}, v{vl5}, 10, v{t2}
s_lshl_b32 s{sT1}, s{sW}, 11
s_add_u32 s{sT0}, s{sT1}, {CA}
v_add_u32 v{vCR}, s{sT0}, v{t2}
s_add_u32 s{sYst}, s{sUo}, {WS_Y2 - WS_KVT}
s_add_u32 s{sYld}, s{sKVo}, {WS_Y2 - WS_KVT}
v_mul_u32_u24 v{t0}, 384, v{vPair}
v_lshl_add_u32 v{vYS}, v{vl7}, 4, v{t0}
s_mul_i32 s{sPXr}, s{sRB}, 7
s_add_u32 s{sPXr}, s{sPXr}, s{sCB}
s_xor_b32 s{sPXw}, s{sRB}, 1
s_mul_i32 s{sPXw}, s{sPXw}, 7
s_add_u32 s{sPXw}, s{sPXw}, s{sCB}
s_add_u32 s{sF2w}, s{sF0w}, {MB2 - MB0}
s_lshl_b32 s{sF2r}, s{sCB}, 2
s_add_u32 s{sF2r}, s{sF2r}, s{sW}
s_lshl_b32 s{sF2r}, s{sF2r}, 2
s_lshr_b32 s{sT0}, s{sRB}, 3
s_add_u32 s{sF2r}, s{sF2r}, s{sT0}
s_lshl_b32 s{sF2r}, s{sF2r}, 7
s_add_u32 s{sF2r}, s{sF2r}, {MB2}
s_lshl_b32 s{sT0}, s{sW}, 7
s_add_u32 s{sT0}, s{sT0}, {MB4}
s_lshl_b32 s{sF3w}, s{sPXw}, 9
s_lshl_b32 s{sF3r}, s{sPXr}, 9
s_add_u32 s{sF3w}, s{sF3w}, s{sT0}
s_add_u32 s{sF3r}, s{sF3r}, s{sT0}
s_mul_i32 s{sT0}, s{sW}, 6144
s_add_u32 s{sT0}, s{sT0}, {WS_PX}
s_mul_i32 s{sPXr}, s{sPXr}, 24576
s_mul_i32 s{sPXw}, s{sPXw}, 24576
s_add_u32 s{sPXr}, s{sPXr}, s{sT0}
s_add_u32 s{sPXw}, s{sPXw}, s{sT0}
v_and_b32 v{t0}, 31, v0
v_lshlrev_b32 v{t0}, 8, v{t0}
v_add_u32 v{t0}, s{sM0b}, v{t0}
v_xor_b32 v{t1}, v{vl7}, v{vl5}""")
    for k in range(4): TS.e(f"v_xor_b32 v{t2}, {2*k}, v{t1}\nv_lshl_add_u32 v{vGW[k]}, v{t2}, 4, v{t0}")
    TS.e(f"""
v_lshlrev_b32 v{t0}, 1, v{vl7}
v_xor_b32 v{t0}, v{t0}, v{vl3}
v_lshlrev_b32 v{t1}, 8, v{vPair}
v_lshl_add_u32 v{vGR}, v{t0}, 4, v{t1}
v_xor_b32 v{vGR2}, 16, v{vGR}
s_lshl_b32 s{sT0}, s{sW}, 4
v_xor_b32 v{vAR}, s{sT0}, v{vGR}
v_add_u32 v{vAR}, {L_AP}, v{vAR}
v_lshrrev_b32 v{t0}, 1, v{vPair}
v_xor_b32 v{t0}, v{t0}, v{vl7}
v_lshlrev_b32 v{t0}, 4, v{t0}
v_and_b32 v{t1}, 1, v{vPair}
v_lshl_add_u32 v{t0}, v{t1}, 3, v{t0}
v_lshl_add_u32 v{t0}, v{vl7}, 11, v{t0}
v_add_u32 v{vAW}, {L_AP}, v{t0}""")
    for k in range(6): TS.e(f"v_mov_b32 v{vGS+4*k+3}, s{sTAG}")
    rtl = f"buffer_load_dwordx2 {vr(vRT,2)}, v{vRA}, {srd(sWS)}, s{sRTo} offen sc1\nbuffer_load_dwordx2 {vr(vRT+2,2)}, v{vRA}, {srd(sWS)}, s{sRTo} offen offset:256 sc1"
    XL = Stream()
    XL.e(f"buffer_load_dwordx4 {vr(vXr,4)}, v{vOut}, {srd(sX)}, s{sOo} offen\nbuffer_load_dwordx4 {vr(vXr+4,4)}, v{vOut}, {srd(sX)}, s{sOo2} offen", tag="xr")
    XL.e(rtl + f"\nglobal_load_dword v{vDd}, v{vTa}, s[14:15]", tag="xr")
    pub = opt.get("pubh", 102)
    npre_w2 = opt.get("w2pre", 4)
    rd_early = Stream()
    for g in range(1, npre_w2): rd_early += w2_read(g)
    P += conv_reads(0)
    P += epi(3)
    for s_ in range(4):
        stamp(P, f"cv_{s_}")
        fill = []
        if s_ < 3: fill.append((conv_reads(s_ + 1), 4, 32))
        if s_ == 0: fill.append(TS[:36])
        if s_ == 1: fill.append(TS[36:]); fill.append(rd_early[:9])
        if s_ == 2: fill.append((rd_early[9:], 0, 28))
        if pub // 36 == s_: fill.append((list(signal("hst", sF1w, sF1x)) + [mark("pub")], pub % 36, pub % 36 + 1))
        P += merge(conv_mfma(s_), *fill)
    stamp(P, "convdone")
    P.e("s_barrier")
    for t in range(8): P.e(f"ds_write_b128 v{vCW}, {ar(cacc+4*t,4)} offset:{t*1024}", tag="cw")
    P.wlg("cw"); P.e("s_barrier")
    yr = RB_; yg = RB_ + 32
    for n0 in range(2):
        for w in range(4): P.e(f"ds_read_b128 {vr(yr+16*n0+4*w,4)}, v{vCR} offset:{w*8192+n0*16}", tag=f"yr{n0}")
    poll_issue(P, sF1r, "poll1")
    for k in range(3): P.e(f"v_mov_b32 v{yg+4*k+3}, s{sTAG}")
    ypos = lambda base, i: base + 4 * (i // 3) + i % 3
    for n0 in range(2):
        P.wlg(f"yr{n0}")
        b = yr + 16 * n0
        P.e(f"""
v_pk_add_f32 {vr(b,2)}, {vr(b,2)}, {vr(b+4,2)}
v_pk_add_f32 {vr(b+2,2)}, {vr(b+2,2)}, {vr(b+6,2)}
v_pk_add_f32 {vr(b+8,2)}, {vr(b+8,2)}, {vr(b+12,2)}
v_pk_add_f32 {vr(b+10,2)}, {vr(b+10,2)}, {vr(b+14,2)}""")
        for r in range(4): P.e(f"v_cvt_pk_bf16_f32 v{ypos(yg, 2*r+n0)}, v{b+r}, v{b+8+r}")
    P.append(mark("pre_y"))
    for k in range(3): P.e(f"buffer_store_dwordx4 {vr(yg+4*k,4)}, v{vYS}, {srd(sWS)}, s{sYst} offen offset:{k*128} sc1", tag="yst")
    P.wvm("xr")
    P += signal(None, sF2w)
    spin(P, f"v_cmp_ne_u32 vcc, s{sTAG}, v{vRT+1}\nv_cmp_ne_u32 s[{sT0}:{sT1}], s{sTAG}, v{vRT+3}\ns_or_b64 vcc, vcc, s[{sT0}:{sT1}]", rtl, "vmcnt(0)")
    assert sT0 % 2 == 0 and sT1 == sT0 + 1
    V.release("D20", "D21", "D22", "D23", "HS0", "HS1", "CA", "CB")
    vDf = va("Df", 2); vY = va("Y", 12, 4)
    P.e(f"""
v_and_b32 v{vRT+1}, 0xffff0000, v{vRT}
v_and_b32 v{vRT+3}, 0xffff0000, v{vRT+2}
v_lshlrev_b32 v{vRT}, 16, v{vRT}
v_lshlrev_b32 v{vRT+2}, 16, v{vRT+2}
v_rcp_f32 v{vRT+1}, v{vRT+1}
v_rcp_f32 v{vRT+3}, v{vRT+3}
v_lshlrev_b32 v{vDf}, 16, v{vDd}
v_and_b32 v{vDf+1}, 0xffff0000, v{vDd}""")
    for i in range(8):
        P.e(f"v_lshlrev_b32 v{vXc+2*i}, 16, v{vXr+i}\nv_and_b32 v{vXc+2*i+1}, 0xffff0000, v{vXr+i}")
    for i in range(8):
        P.e(f"v_pk_add_f32 {vr(vXc+2*i,2)}, {vr(vXc+2*i,2)}, {vr(vRT+2*(i//4),2)} op_sel_hi:[1,0]")
    stamp(P, "yst")
    poll_check(P, sF1r, "poll1")
    stamp(P, "g2go")
    NH = 16; hf = RA; gacc = RB_
    def hload(n):
        a, i = divmod(n, 14)
        s = Stream()
        txt = f"buffer_load_dwordx4 {vr(hf+4*(n%NH),4)}, v{vl16}, {srd(sWS)}, s{sHo} offen offset:{(i%4)*1024} sc1"
        if i % 4 == 3: txt += f"\ns_add_u32 s{sHo}, s{sHo}, 4096"
        elif i == 13 and a == 1: txt += f"\ns_mov_b32 s{sHo}, s{sHo2}"
        elif i == 13 and a != 3: txt += f"\ns_add_u32 s{sHo}, s{sHo}, {57344 - 12288}"
        s.glue(txt, tag=f"h{n}")
        return s
    NPRE = opt.get("npre", 12)
    for n in range(NPRE): P += hload(n)
    late = Stream()
    for g in range(npre_w2, 7): late += w2_read(g)
    P += late
    def g2_tile(a):
        s = Stream()
        for i in range(14):
            n = 14 * a + i
            s.wvm(f"h{n}")
            stamp(s, f"h_{n}")
            if a == 0 and i // 2 >= npre_w2: s.wlg(f"w2r{i//2}")
            for dt in range(2):
                c = gacc + (2*(a%2)+dt)*16
                s.e(f"v_mfma_f32_32x32x16_bf16 {vr(c,16)}, {ar((2*i+dt)*4,4)}, {vr(hf+4*(n%NH),4)}, {'0' if i == 0 else vr(c,16)}")
            if n + NPRE < 56: s += hload(n + NPRE)
        return s
    gslot = lambda a: (a % 2) * SLOT
    def gwrite(a):
        s = Stream()
        for dt in range(2):
            for k in range(4):
                s.e(f"ds_write_b128 v{vGW[k]}, {vr(gacc+(2*(a%2)+dt)*16+4*k,4)} offset:{gslot(a)+dt*128}", tag=f"gw{a}")
        return s
    def gread(a, b):
        s = Stream()
        for w in range(4):
            s.e(f"ds_read_b128 {vr(b+8*w,4)}, v{vGR} offset:{w*8192+gslot(a)}\nds_read_b128 {vr(b+8*w+4,4)}, v{vGR2} offset:{w*8192+gslot(a)}", tag=f"rd{a}")
        return s
    gpos = lambda idx: vGS + 4 * (idx // 3) + idx % 3
    def greduce(a, p):
        b = gacc + 32 * (a % 2)
        s0 = Stream(); s0.wlg(*([f"gw{a}", "aw"] if a == 2 else [f"gw{a}"])); s0.e("s_barrier")
        s2 = Stream(); s2.wlg(f"rd{a}")
        for r in range(8):
            d = gpos(8 * a + r) if a < 2 else vS2 + r
            s2.e(f"v_add_f32 v{b+r}, v{b+r}, v{b+8+r}\nv_add_f32 v{b+16+r}, v{b+16+r}, v{b+24+r}\nv_add_f32 v{d}, v{b+r}, v{b+16+r}")
        return [(s0, p, p + 1), (gread(a, b), p, p + 4), (s2, p + 7, min(28, p + 12))]
    def px(st, so):
        s = Stream()
        for k in range(6):
            op = "store" if st else "load"
            if k == 4: txt = f"s_add_u32 s3, s{so}, 4096\n"
            else: txt = ""
            s.glue(txt + f"buffer_{op}_dwordx4 {vr(vGS+4*k,4)}, v{vl16}, {srd(sWS)}, s{so if k < 4 else 3} offen offset:{(k%4)*1024} sc1", tag="pxs" if st else "pxl")
        return s
    ylt = "\n".join(f"buffer_load_dwordx4 {vr(vY+4*k,4)}, v{vYA}, {srd(sWS)}, s{sYld} offen offset:{k*128} sc1" for k in range(3))
    yl = Stream().e(ylt, tag="y")
    AP = Stream()
    AP.wvm("y")
    spin(AP, tagchk([vY+3, vY+7, vY+11]), ylt, "vmcnt(0)")
    for i in range(8):
        yreg = ypos(vY, i)
        AP.e(f"""
v_lshlrev_b32 v{t1}, 16, v{yreg}
v_and_b32 v{t2}, 0xffff0000, v{yreg}
v_fma_f32 v{vKVf+2*i}, v{vKVf+2*i}, v{vDf}, v{t1}
v_fma_f32 v{vKVf+2*i+1}, v{vKVf+2*i+1}, v{vDf+1}, v{t2}
v_xor_b32 v{t0 if i % 2 else t3}, {i*16}, v{vAW}""")
        AP.e(f"ds_write_b64 v{t0 if i % 2 else t3}, {vr(vKVf+2*i,2)} offset:{i*256}", tag="aw")
    o = opt.get
    yp = poll_issue(Stream(), sF2r, "poll2")
    yl = poll_check(Stream(), sF2r, "poll2").e(ylt, tag="y")
    xp = Stream().e(f"s_load_dword s{sPL}, s[26:27], s{sF3r} glc", tag="poll3")
    xl = Stream(); xl.wlg("poll3")
    spin(xl, f"s_cmp_lg_u32 s{sPL}, s{sTAG}", f"s_load_dword s{sPL}, s[26:27], s{sF3r} glc", "lgkmcnt(0)")
    xl += px(0, sPXr)
    gw = o("gw", 10)
    P += g2_tile(0)
    P += merge(g2_tile(1), (gwrite(0), 2, gw), *greduce(0, gw + 3), (yp, o("ypp", 20), o("ypp", 20) + 1))
    P += merge(g2_tile(2), (gwrite(1), 2, gw), *greduce(1, gw + 2), (yl, o("ylp", 11), o("ylp", 11) + 4), (px(1, sPXw), gw + 14, 28))
    P += merge(g2_tile(3), (signal(None, sF3w), o("sgx", 4), o("sgx", 4) + 1), (gwrite(2), 2, gw), (AP, 2, 15), *greduce(2, 16), (xp, o("xpp", 17), o("xpp", 17) + 1))
    stamp(P, "g2done")
    P.e(f"v_xor_b32 v{t3}, 16, v{vAR}\nv_xor_b32 v{t0}, 64, v{vAR}\nv_xor_b32 v{t1}, 80, v{vAR}")
    rd = hf
    P.e(f"ds_read_b128 {vr(rd+32,4)}, v{vAR}\nds_read_b128 {vr(rd+36,4)}, v{t3}\nds_read_b128 {vr(rd+40,4)}, v{t0} offset:8192\nds_read_b128 {vr(rd+44,4)}, v{t1} offset:8192", tag="ra")
    P += xl
    P += gwrite(3)
    P.wvm("pxl")
    chk = tagchk([vGS + 4*k + 3 for k in range(6)])
    rel = "\n".join(x.t for x in flatten(px(0, sPXr))).replace("s3,", f"s{sT2},").replace(" s3 ", f" s{sT2} ")
    spin(P, chk, rel, "vmcnt(0)")
    P.wlg("ra")
    ost = opt.get("ost", "sc1")
    z = rd + 32
    for r in range(16): P.e(f"v_fma_f32 v{z+r}, v{vXc+r}, v{z+r}, v{gpos(r)}")
    for r in range(0, 16, 2): P.e(f"v_pk_add_f32 {vr(vXc+r,2)}, {vr(vXc+r,2)}, {vr(vRT+2*(r//8),2)} op_sel_hi:[1,0] neg_lo:[0,1] neg_hi:[0,1]")
    def fin(b, st, so):
        for r in range(0, 8, 2): P.e(f"v_pk_add_f32 {vr(b+r,2)}, {vr(b+r,2)}, {vr(z+8*st+r,2)}")
        for r in range(0, 8, 2): P.e(f"v_pk_fma_f32 {vr(b+r,2)}, {vr(b+r,2)}, {vr(vRT+2*st,2)}, {vr(vXc+8*st+r,2)} op_sel:[0,1,0] op_sel_hi:[1,1,1]")
        o = rd + 48 + 4 * st
        for r in range(4): P.e(f"v_cvt_pk_bf16_f32 v{o+r}, v{b+2*r}, v{b+2*r+1}")
        P.e(f"buffer_store_dwordx4 {vr(o,4)}, v{vOut}, {srd(sO)}, s{so} offen {ost}", tag="ost")
    P.wlg("gw3"); P.e("s_barrier")
    stamp(P, "lastbar")
    P += gread(3, rd)
    fin(vS2, 0, sOo)
    P.wlg("rd3")
    b = rd
    for r in range(0, 8, 2):
        P.e(f"v_pk_add_f32 {vr(b+r,2)}, {vr(b+r,2)}, {vr(b+8+r,2)}\nv_pk_add_f32 {vr(b+16+r,2)}, {vr(b+16+r,2)}, {vr(b+24+r,2)}")
    for r in range(0, 8, 2): P.e(f"v_pk_add_f32 {vr(b+r,2)}, {vr(b+r,2)}, {vr(b+16+r,2)}")
    fin(b, 1, sOo2)
    if diag:
        stamp(P, "ostiss")
        P.wvm("ALL")
        stamp(P, "end")
        P.e(f"s_waitcnt lgkmcnt(0)\ns_mul_i32 s{sT2}, s{sRB}, 7\ns_add_u32 s{sT2}, s{sT2}, s{sCB}\ns_lshl_b32 s{sT2}, s{sT2}, 2\ns_add_u32 s{sT2}, s{sT2}, s{sW}\ns_lshl_b32 s{sT2}, s{sT2}, 6\ns_add_u32 s{sT2}, s{sT2}, {WS_STAMP}\ns_mov_b64 exec, 1")
        for i, r in enumerate([4] + used_st + [used_st[-1]] * (9 - len(used_st))):
            P.e(f"v_mov_b32 v{t0}, s{r}\nbuffer_store_dword v{t0}, v{vZero}, {srd(sWS)}, s{sT2} offen offset:{4*i}")
    P.e("END:\ns_endpgm")

    pk_, pv_ = p0_loads()
    dflt = "s2@k0,s3@k2,s4@k6,pk@k8,pv@k8,s5@k10,s6@k14,w0@k14,c@k18,r@k20,w1@k18,w2@k18,u@k24,w3@k22"
    for it in opt.get("order", dflt).split(","):
        nm, e = it.split("@")
        if nm[0] == "s": q(g1_dma(int(nm[1])), e, f"pb{int(nm[1])-1}")
        elif nm == "pk": q(pk_, e, f"pb{p0pos}")
        elif nm == "pv": q(pv_, e, f"pb{p0pos}")
        elif nm == "u": q(poll_check(Stream(), sF0r, "poll0").e(ul, tag="u"), e, "pb6")
        elif nm == "c": q(convA_load(), e, "pb6")
        elif nm == "r": q(w2_read(0), e, "pb6")
        elif nm[0] == "w": q(w2_dma(int(nm[1:])), e, "e0")
    for n in range(4): q(hstore(n), f"e{n}", "c60")
    npost = opt.get("npost", 1)
    for g in range(npre_w2, 7): q(w2_dma(g), "e3" if g < npre_w2 + npost else "pub", "pre_y")
    q(XL, "pub", "pre_y")
    paces = {"k0": opt.get("pace", 68), "e0": opt.get("pace_st", 64), "pub": opt.get("pace_pub", 64)}
    P = head + inject(P, Q, paces, verbose=opt.get("v", 0))
    H2 = helper(opt)
    for x in H2: x.kind = "cond"
    ins = resolve_waits(place_m0(flatten(P)), dummy=f"ds_read_b32 v{vDum}, v{vZero}")
    ins = pad_hazards(ins) + pad_hazards(list(tail)) + pad_hazards(list(H2))
    body = "\n".join(("" if x.t.endswith(":") else "  ") + x.t for x in ins)
    hdr = open("parallel_sum__ssm_conv_h3__dense_activation_relu__prompt.s.ref").read().split("; Override launch")[0]
    pad = opt.get("pad", 3328)
    return f"""{hdr}; generated by gen/gen5.py (own generator); fused LN + short conv + long conv (Toeplitz MFMA) + MLP
; @launch grid=(256,1,1) block=(256,1,1) lds={LDS_SIZE}
.amdgcn_target "amdgcn-amd-amdhsa--gfx950"
.text
.globl {KN}
.p2align 12
.fill {pad//4}, 4, 0xbf800000
.p2align 8
.type {KN},@function
{KN}:
{body}
CODE_END:
.section .rodata,"a"
.p2align 6
.amdhsa_kernel {KN}
  .amdhsa_next_free_vgpr 512
  .amdhsa_next_free_sgpr 102
  .amdhsa_accum_offset 256
  .amdhsa_group_segment_fixed_size 0
  .amdhsa_kernarg_size 96
  .amdhsa_user_sgpr_count 2
  .amdhsa_user_sgpr_kernarg_segment_ptr 1
  .amdhsa_system_sgpr_workgroup_id_x 1
  .amdhsa_float_denorm_mode_32 3
.end_amdhsa_kernel
"""

if __name__ == "__main__":
    opt = {}
    out = "parallel_sum__ssm_conv_h3__dense_activation_relu__prompt.s"
    for a in sys.argv[1:]:
        k, v = a.split("=")
        if k == "out": out = v
        else: opt[k] = int(v) if v.lstrip("-").isdigit() else v
    open(out, "w").write(gen(opt))
    print("wrote", out)
```

```python
import sys
from asmlib import *

KN = "parallel_sum__ssm_conv_h3__dense_activation_relu__prompt_kernel"
XB = 2048 * 448 * 2
WB = 448 * 1792 * 2
WS_E = 0
MB0, MB1, MB2, MB4 = 0x1000, 0x9000, 0xD000, 0x20000
WS_RT = 0x58000
WS_CT = 0x60000
TAGMASK = 0xBFFFBFFF
WS_STAMP = 0x98000
WS_KVT = 0x100000
WS_Y2 = 0x3A0000
WS_H = 0x640000
WS_PX = WS_H + 0x700000
WS_END = WS_PX + 224 * 24576
SLOT = 32768
CA = 98304
CB = CA + 33280
MISC = 150016
L_EX = MISC
L_EXC = MISC + 1024
L_EXZ = MISC + 2048
L_STT = MISC + 2304
LDS_SIZE = MISC + 2304 + 512
P0K = CB; P0V = P0K + 9 * 1040
L_AP = 131840
assert L_AP >= CB and L_AP + 16384 <= MISC and L_AP % 256 == 0
LCG_A = 0x9E3779B1; LCG_C = 0x7F4A7C15

def helper(opt):
    H = Stream()
    bfr = lambda r: f"v_cvt_pk_bf16_f32 v{r}, v{r}, v{r}\nv_lshlrev_b32 v{r}, 16, v{r}"
    H.e(f"""
HELPER:
v_lshrrev_b32 v3, 6, v0
v_and_b32 v4, 63, v0
s_and_b32 s61, s2, 7
v_readfirstlane_b32 s60, v3
s_lshr_b32 s62, s2, 3
s_lshr_b32 s63, s61, 1
s_and_b32 s64, s61, 1
s_lshl_b32 s65, s63, 2
s_add_u32 s65, s65, s62
s_lshl_b32 s66, s65, 1
s_add_u32 s66, s66, s64
v_lshrrev_b32 v5, 3, v4
v_and_b32 v6, 7, v4
v_mul_u32_u24 v7, 896, v5
v_lshl_add_u32 v7, v6, 4, v7
v_add_u32 v8, 7168, v7
s_lshl_b32 s67, s66, 2
s_add_u32 s67, s67, s60
s_mul_i32 s67, s67, {16*896}
s_min_u32 s68, s65, 13
s_mul_i32 s69, s64, 14
s_add_u32 s72, s68, s69
s_lshl_b32 s68, s72, 7
s_mul_i32 s69, s60, {16*3584}
s_add_u32 s68, s68, s69
v_mul_u32_u24 v9, 3584, v5
v_lshl_add_u32 v9, v6, 4, v9
v_add_u32 v24, {8*3584}, v9
s_mov_b32 s30, {XB}
s_mov_b32 s31, 0x20000
s_mov_b32 s42, {WB}
s_mov_b32 s43, 0x20000
s_mov_b32 s46, {WB}
s_mov_b32 s47, 0x20000
s_mov_b32 s54, {WS_END}
s_mov_b32 s55, 0x20000
s_waitcnt lgkmcnt(0)
s_mov_b64 s[28:29], s[4:5]
s_mov_b64 s[40:41], s[18:19]
s_mov_b64 s[44:45], s[20:21]
s_mov_b64 s[52:53], s[26:27]
s_load_dword s100, s[26:27], 0""")
    H.e(f"""
s_mov_b64 s[48:49], s[12:13]
s_mov_b32 s50, {XB}
s_mov_b32 s51, 0x20000
s_mov_b64 s[32:33], s[6:7]
s_mov_b32 s34, {XB}
s_mov_b32 s35, 0x20000
s_mov_b64 s[36:37], s[8:9]
s_mov_b32 s38, {XB}
s_mov_b32 s39, 0x20000""")
    nops = 0
    def items(key, dflt):
      nonlocal nops
      for item in [x for x in opt.get(key, dflt).split(",") if x and x != "-"]:
        if False: pass
        elif item == "s":
            H.e(f"""
s_lshl_b32 s69, s66, 13
v_lshlrev_b32 v11, 18, v3
v_lshl_add_u32 v11, v4, 7, v11
buffer_load_dword v15, v11, s[48:51], s69 offen
v_add_u32 v11, 0x100000, v11
buffer_load_dword v15, v11, s[48:51], s69 offen""")
            nops += 2
        elif item in ("kv", "k", "v"):
            H.e(f"""
s_mul_i32 s69, s66, {64*896}
s_sub_u32 s70, s69, 7168
s_cmp_eq_u32 s66, 0
s_cselect_b32 s70, 0, s70
v_lshlrev_b32 v11, 7, v0
v_add_u32 v12, {256*128}, v11
v_min_u32 v12, {503*128}, v12""")
            for r in (11, 12):
                for c in item:
                    H.e(f"buffer_load_dword v15, v{r}, s[{32 if c == 'k' else 36}:{35 if c == 'k' else 39}], s70 offen"); nops += 1
        elif item[0] == "W":
            g0 = int(item[1:] or 0); nl = (7 - g0) * 224
            H.e(f"s_lshl_b32 s69, s64, 2\ns_add_u32 s69, s69, s62\ns_mul_i32 s69, s69, {224*896}\ns_add_u32 s69, s69, {g0*32*896}\nv_lshlrev_b32 v11, 7, v0")
            for n in range(-(-nl // 256)):
                if (n + 1) * 256 > nl: H.e(f"v_min_u32 v11, {(nl - n * 256 - 1) * 128}, v11")
                H.e(f"buffer_load_dword v10, v11, s[44:47], s69 offen\ns_add_u32 s69, s69, 32768")
                nops += 1
        elif item[0] == "z":
            H.e(f"s_sleep {int(item[1:])}")
        elif item == "w":
            H.e(f"""
s_lshl_b32 s69, s64, 2
s_add_u32 s69, s69, s62
s_lshl_b32 s69, s69, 2
s_add_u32 s69, s69, s63
s_mul_i32 s69, s69, {392*128}
v_lshlrev_b32 v11, 7, v0
v_add_u32 v12, 32768, v11
v_min_u32 v12, {391*128}, v12
buffer_load_dword v10, v11, s[44:47], s69 offen
buffer_load_dword v10, v12, s[44:47], s69 offen""")
            nops += 2
    hst = lambda k: H.e(f"s_memrealtime s[{80+2*k}:{81+2*k}]") if opt.get("diag") else None
    hst(0)
    items("hpre", "-")
    H.e("v_mov_b32 v14, 0x3f803f80")
    for r in range(16, 20): H.e(f"v_mov_b32 v{r}, 0")
    for r in range(150, 158): H.e(f"v_mov_b32 v{r}, 0")
    def ld(st):
        b = 32 + 16 * st
        H.e(f"""
buffer_load_dwordx4 v[{b}:{b+3}], v7, s[28:31], s67 offen offset:{st*128}
buffer_load_dwordx4 v[{b+8}:{b+11}], v9, s[40:43], s68 offen
buffer_load_dwordx4 v[{b+4}:{b+7}], v8, s[28:31], s67 offen offset:{st*128}
buffer_load_dwordx4 v[{b+12}:{b+15}], v24, s[40:43], s68 offen
s_add_u32 s68, s68, {64*3584}""")
    def comp(st):
        b = 32 + 16 * st
        for k in range(4):
            for h in range(2):
                r = b + 4*h + k
                H.e(f"v_dot2_f32_bf16 v{16+2*h}, v{r}, v14, v{16+2*h}\nv_dot2_f32_bf16 v{17+2*h}, v{r}, v{r}, v{17+2*h}")
        for h in range(2):
            for k in range(4):
                r = b + 8 + 4*h + k
                H.e(f"v_lshlrev_b32 v{160+2*k}, 16, v{r}\nv_and_b32 v{161+2*k}, 0xffff0000, v{r}")
            for k in range(4): H.e(f"v_pk_add_f32 v[{150+2*k}:{151+2*k}], v[{150+2*k}:{151+2*k}], v[{160+2*k}:{161+2*k}]")
    for st in range(3): ld(st)
    for st in range(7):
        if st + 3 < 7: ld(st + 3); H.e("s_waitcnt vmcnt(12)")
        else:
            if st == 4: nops = 0; items("hmid", "-")
            H.e(f"s_waitcnt vmcnt({4 * (6 - st) + nops})")
        if st in (0, 3, 6): hst(1 + st // 3)
        comp(st)
    H.e(f"""
v_lshlrev_b32 v25, 5, v0
ds_write_b128 v25, v[152:155] offset:8
ds_write_b64 v25, v[150:151]
ds_write_b64 v25, v[156:157] offset:24""".replace("ds_write_b128 v25, v[152:155] offset:8", "ds_write_b64 v25, v[152:153] offset:8\nds_write_b64 v25, v[154:155] offset:16"))
    for m in ("quad_perm:[1,0,3,2]", "quad_perm:[2,3,0,1]", "row_half_mirror"):
        for r in range(16, 20): H.e(f"v_add_f32_dpp v{r}, v{r}, v{r} {m} row_mask:0xf bank_mask:0xf")
    H.e(f"""
v_cmp_eq_u32 vcc, 1, v6
s_waitcnt lgkmcnt(0)
s_barrier
v_lshlrev_b32 v26, 2, v4""")
    for k in range(16): H.e(f"ds_read2st64_b32 v[{32+2*k}:{33+2*k}], v26 offset0:{2*k} offset1:{2*k+1}")
    H.e(f"""
s_mul_i32 s101, s100, {LCG_A}
s_add_u32 s101, s101, {LCG_C}
s_and_b32 s100, s101, {TAGMASK}
v_cndmask_b32 v16, v16, v18, vcc
v_cndmask_b32 v17, v17, v19, vcc
v_mul_f32 v16, {-1.0/448!r}, v16
v_mul_f32 v17, {1.0/448!r}, v17
v_fma_f32 v17, -v16, v16, v17
v_max_f32 v17, 0, v17
{bfr(17)}
v_add_f32 v17, 0x3727c5ac, v17
{bfr(17)}
v_sqrt_f32 v17, v17
v_lshl_add_u32 v20, v6, 3, v5
v_lshlrev_b32 v20, 4, v20
v_cvt_pk_bf16_f32 v17, v16, v17
v_cvt_pk_bf16_f32 v16, v16, v16
v_mov_b32 v18, 0
v_mov_b32 v19, s100
s_lshl_b32 s67, s66, 2
s_add_u32 s67, s67, s60
s_lshl_b32 s67, s67, 8
s_add_u32 s67, s67, {WS_RT}
v_cmp_gt_u32 vcc, 2, v6
s_and_saveexec_b64 s[70:71], vcc
buffer_store_dwordx4 v[16:19], v20, s[52:55], s67 offen sc1
s_mov_b64 exec, s[70:71]
s_cmp_lg_u32 s60, 0
s_cbranch_scc1 HPOST
s_waitcnt lgkmcnt(0)""")
    for w_ in (16, 8, 4, 2):
        for k in range(0, w_, 2): H.e(f"v_pk_add_f32 v[{32+k}:{33+k}], v[{32+k}:{33+k}], v[{32+w_+k}:{33+w_+k}]")
    H.e(f"""
v_add_f32 v32, v32, v33
v_and_b32 v33, 0xffff0000, v32
v_sub_f32 v34, v32, v33
v_and_b32 v35, 0xffff0000, v34
v_sub_f32 v34, v34, v35
v_lshrrev_b32 v33, 16, v33
v_or_b32 v36, v33, v35
v_lshrrev_b32 v37, 16, v34
v_mov_b32 v38, s100
v_mov_b32 v39, 0
v_lshlrev_b32 v26, 4, v4
s_lshl_b32 s72, s72, 10
s_add_u32 s72, s72, {WS_CT}
buffer_store_dwordx4 v[36:39], v26, s[52:55], s72 offen sc1
HPOST:""")
    hst(4)
    items("hpost", "w")
    if opt.get("diag"):
        H.e("s_waitcnt vmcnt(0)"); hst(5)
        H.e(f"s_waitcnt lgkmcnt(0)\ns_lshl_b32 s73, s2, 2\ns_add_u32 s73, s73, s60\ns_lshl_b32 s73, s73, 6\ns_add_u32 s73, s73, {WS_STAMP + 896*64}\nv_mov_b32 v27, 0\nv_mov_b32 v28, s92\nbuffer_store_dword v28, v27, s[52:55], s73 offen")
        for k in range(6): H.e(f"v_mov_b32 v28, s{80+2*k}\nbuffer_store_dword v28, v27, s[52:55], s73 offen offset:{4+4*k}")
    H.e("s_cmp_lg_u32 s2, 0\ns_cbranch_scc1 HEND")
    H.e(f"""
v_lshrrev_b32 v21, 3, v0
v_lshlrev_b32 v21, 9, v21
v_lshl_add_u32 v21, v6, 2, v21
v_add_u32 v21, {MB0}, v21
v_subrev_u32 v22, 224, v0
v_lshlrev_b32 v22, 10, v22
v_add_u32 v22, {WS_RT + 12}, v22
v_cmp_gt_u32 vcc, 224, v0
s_mov_b32 s3, 100000
v_cndmask_b32 v21, v22, v21, vcc
HPOLL:
s_sleep 32
buffer_load_dword v23, v21, s[52:55], 0 offen sc1
s_sub_u32 s3, s3, 1
s_cmp_eq_u32 s3, 0
s_waitcnt vmcnt(0)
s_cbranch_scc1 HGO
v_cmp_ne_u32 vcc, s100, v23
s_cbranch_vccnz HPOLL
HGO:
s_barrier
s_cmp_lg_u32 s60, 0
s_cbranch_scc1 HEND
s_atomic_swap s101, s[26:27], 0
HEND:
s_endpgm""")
    return H

def gen(opt):
    diag = opt.get("diag", 0)
    p0pos = opt.get("p0pos", -1)
    V = RegAlloc("v", 1, 112); va = V.alloc
    RA, RB_, RC = 112, 176, 240
    sX, sK, sV, sW1, sW2, sH, sWS, sO = 28, 32, 36, 40, 44, 48, 52, 56
    S = RegAlloc("s", 60, 92)
    sa = lambda n: S.alloc(n)
    sW, sRB, sCB = [sa(n) for n in "W RB CB".split()]
    sXo, sWo, sSt, sM0a, sM0b, sXinc, sWinc = [sa(n) for n in "Xo Wo St M0a M0b Xinc Winc".split()]
    sT0, sT1, sT2 = sa("T0"), sa("T1"), sa("T2")
    sR, sHALF = 94, 95
    sPL = 92; sTAG = 100
    srd = lambda n: f"s[{n}:{n+3}]"
    vr = lambda b, n: f"v[{b}:{b+n-1}]" if n > 1 else f"v{b}"
    ar = lambda b, n: f"a[{b}:{b+n-1}]" if n > 1 else f"a{b}"
    stamp_regs = [6, 8, 12, 16, 18, 20, 22, 24]
    used_st = []
    sel = opt.get("stamps", "g1go,g1b_6,cv_0,convdone,g2go,g2done,ostiss,end").split(",")
    smn = 's_memtime' if diag == 2 else 's_memrealtime'
    def stamp(s, name):
        if diag and name in sel:
            r = stamp_regs[len(used_st)]; used_st.append(r)
            s.e(f"{smn} s[{r}:{r+1}]", tag="stamp")
    tail = Stream()
    npoll = [0]
    def spin(s, chk, reload, wait):
        k = npoll[0]; npoll[0] += 1
        s.glue(chk + f"\ns_cbranch_scc1 RETRY{k}\nOK{k}:")
        for t in f"""RETRY{k}:
s_mov_b32 s3, 100000
RL{k}:
{reload}
s_sub_u32 s3, s3, 1
s_cmp_eq_u32 s3, 0
s_waitcnt {wait}
s_cbranch_scc1 OK{k}
{chk}
s_cbranch_scc1 RL{k}
s_branch OK{k}""".split("\n"): tail.append(I(t, kind="cond"))
    pl = lambda sOff: f"s_load_dwordx8 s[{sPL}:{sPL+7}], s[26:27], s{sOff} glc"
    def poll_issue(s, sOff, tag): s.e(pl(sOff), tag=tag); return s
    def poll_check(s, sOff, tag):
        chk = "\n".join(f"s_xor_b64 s[{sPL+2*i}:{sPL+2*i+1}], s[{sPL+2*i}:{sPL+2*i+1}], s[{sTAG}:{sTAG+1}]" for i in range(4)) + f"""
s_or_b64 s[{sPL}:{sPL+1}], s[{sPL}:{sPL+1}], s[{sPL+2}:{sPL+3}]
s_or_b64 s[{sPL+4}:{sPL+5}], s[{sPL+4}:{sPL+5}], s[{sPL+6}:{sPL+7}]
s_or_b64 s[{sPL}:{sPL+1}], s[{sPL}:{sPL+1}], s[{sPL+4}:{sPL+5}]"""
        s.wlg(tag); spin(s, chk, pl(sOff), "lgkmcnt(0)"); return s
    def signal(vmtag, *offs):
        s = Stream()
        if vmtag: s.wvm(vmtag)
        for o in offs: s.e(f"s_atomic_swap s{sTAG}, s[26:27], s{o}", tag="sig")
        return s

    P = Stream()
    t0, t1, t2, t3 = va("t0"), va("t1"), va("t2"), va("t3")
    vDum = va("dum")
    vl3, vl7, vl4, vl5, vl16, vPair = [va(n) for n in "l3 l7 l4 l5 l16 pair".split()]
    vDX = [va(f"DX{q}") for q in range(4)]; vDW = [va(f"DW{q}") for q in range(4)]
    if diag: P.e(f"{smn} s[92:93]", tag="stamp")
    P.e("s_load_dwordx16 s[4:19], s[0:1], 0\ns_load_dwordx8 s[20:27], s[0:1], 64", tag="karg")
    P.e(f"""
v_lshrrev_b32 v{t0}, 6, v0
s_cmp_lt_u32 s2, 32
s_cbranch_scc1 HELPER
s_cmp_ge_u32 s2, 256
s_cbranch_scc1 END
v_readfirstlane_b32 s{sW}, v{t0}
v_and_b32 v0, 63, v0
s_sub_u32 s3, s2, 32
s_and_b32 s{sT0}, s3, 7
s_lshr_b32 s{sT1}, s3, 3
s_cmp_lg_u32 s{sW}, 3
s_cbranch_scc1 NOPF
s_getpc_b64 s[96:97]
PCREF:
s_mul_i32 s3, s{sT1}, 768
v_lshl_add_u32 v{t1}, v0, 7, s3
v_add_u32 v{t1}, 3968, v{t1}
v_min_u32 v{t1}, CODE_END-PCREF-4, v{t1}
s_mov_b64 exec, 63
PFLOAD
s_mov_b64 exec, -1
NOPF:
s_mul_i32 s{sT2}, s{sT1}, 37
s_lshr_b32 s{sT2}, s{sT2}, 8
s_mul_i32 s3, s{sT2}, 7
s_sub_u32 s{sCB}, s{sT1}, s3
s_lshr_b32 s{sR}, s{sT0}, 1
s_lshl_b32 s{sR}, s{sR}, 2
s_add_u32 s{sR}, s{sR}, s{sT2}
s_and_b32 s{sHALF}, s{sT0}, 1
v_lshrrev_b32 v{vl3}, 3, v0
v_and_b32 v{vl7}, 7, v0
v_lshrrev_b32 v{vl4}, 4, v0
v_mul_u32_u24 v{t3}, 896, v{vl3}
v_xor_b32 v{t1}, v{vl7}, v{vl4}
v_lshl_add_u32 v{vDX[0]}, v{t1}, 4, v{t3}
v_xor_b32 v{t1}, 4, v{t1}
v_lshl_add_u32 v{vDX[1]}, v{t1}, 4, v{t3}
v_add_u32 v{vDX[2]}, {2*6144}, v{vDX[0]}
v_add_u32 v{vDX[3]}, {3*6144}, v{vDX[1]}
v_add_u32 v{vDX[1]}, {6144}, v{vDX[1]}
v_mul_u32_u24 v{t0}, 3584, v{vl4}
v_and_b32 v{t1}, 15, v0
v_lshlrev_b32 v{t2}, 2, v{vl4}
v_xor_b32 v{t1}, v{t1}, v{t2}
v_lshl_add_u32 v{vDW[0]}, v{t1}, 4, v{t0}
v_add_u32 v{vDW[1]}, {4*3584-1024}, v{vDW[0]}
v_add_u32 v{vDW[2]}, {2*(4*3584-1024)}, v{vDW[0]}
v_add_u32 v{vDW[3]}, {3*(4*3584-1024)}, v{vDW[0]}
s_lshl_b32 s{sXo}, s{sR}, 2
s_add_u32 s{sXo}, s{sXo}, s{sW}
s_mul_i32 s{sXo}, s{sXo}, {32*896}
s_mul_i32 s{sWo}, s{sW}, {16*3584}
s_mul_i32 s{sT1}, s{sHALF}, 7
s_add_u32 s{sT1}, s{sT1}, s{sCB}
s_lshl_b32 s{sT1}, s{sT1}, 8
s_add_u32 s{sWo}, s{sWo}, s{sT1}
s_lshl_b32 s{sM0a}, s{sW}, 12""")
    for x in P:
        if x.t == "PFLOAD": x.t = f"global_load_dword v{vDum}, v{t1}, s[96:97]"; x.kind = "cond"
    rot = opt.get("rot", 0)
    if rot:
        if rot == 1: P.e(f"s_add_u32 s{sSt}, s{sR}, s{sCB}")
        elif rot in (4, 5):
            P.e(f"s_and_b32 s{sSt}, s{sCB}, 3\ns_add_u32 s{sSt}, s{sSt}, s{sT2}\ns_lshl_b32 s{sSt}, s{sSt}, 1")
            if rot == 5: P.e(f"s_lshr_b32 s3, s{sT0}, 1\ns_xor_b32 s3, s3, s{sT0}\ns_and_b32 s3, s3, 1\ns_add_u32 s{sSt}, s{sSt}, s3")
        elif rot in (6, 7):
            P.e(f"s_add_u32 s{sSt}, s{sCB}, s{sT2}\ns_and_b32 s{sSt}, s{sSt}, 1\ns_lshl_b32 s{sSt}, s{sSt}, 2")
            if rot == 7: P.e(f"s_lshr_b32 s3, s{sT0}, 1\ns_and_b32 s{sT1}, s{sT0}, 1\ns_lshl_b32 s{sT1}, s{sT1}, 1\ns_xor_b32 s3, s3, s{sT1}\ns_add_u32 s{sSt}, s{sSt}, s3")
        elif rot == 8: P.e(f"s_lshl_b32 s{sSt}, s{sR}, 1\ns_add_u32 s{sSt}, s{sSt}, s{sCB}")
        P.e(f"""
s_mul_i32 s{sT1}, s{sSt}, 37
s_lshr_b32 s{sT1}, s{sT1}, 8
s_mul_i32 s{sT1}, s{sT1}, 7
s_sub_u32 s{sSt}, s{sSt}, s{sT1}
s_lshl_b32 s{sT1}, s{sSt}, 7
s_add_u32 s{sXo}, s{sXo}, s{sT1}
s_mul_i32 s{sT1}, s{sSt}, {64*3584}
s_add_u32 s{sWo}, s{sWo}, s{sT1}""")
    else:
        P.e(f"s_mov_b32 s{sSt}, 0")
    P.e(f"s_mov_b32 s{sX+2}, {XB}\ns_mov_b32 s{sX+3}, 0x20000\ns_mov_b32 s{sW1+2}, {WB}\ns_mov_b32 s{sW1+3}, 0x20000\ns_movk_i32 s{sXinc}, 128\ns_mov_b32 s{sWinc}, {64*3584}")
    def g1_dma(i):
        s = Stream(); sl = i % 3
        for q in range(4): s.dma(f"buffer_load_dwordx4 v{vDX[q]}, {srd(sX)}, s{sXo} offen offset:{q*1024} lds", (sM0a, sl*SLOT), f"g1d{i}")
        for q in range(4): s.dma(f"buffer_load_dwordx4 v{vDW[q]}, {srd(sW1)}, s{sWo} offen offset:{q*1024} lds", (sM0a, sl*SLOT+16384), f"g1d{i}")
        if i < 6:
            s.glue(f"""s_add_u32 s{sSt}, s{sSt}, 1
s_cmp_eq_u32 s{sSt}, 7
s_cselect_b32 s3, {(128-896) & 0xffffffff}, s{sXinc}
s_add_u32 s{sXo}, s{sXo}, s3
s_cmp_eq_u32 s{sSt}, 7
s_cselect_b32 s3, {(64*3584-448*3584) & 0xffffffff}, s{sWinc}
s_add_u32 s{sWo}, s{sWo}, s3""")
        return s
    P.append(mark("P0SU"))
    P.e(f"s_mov_b32 s{sK+2}, {XB}\ns_mov_b32 s{sK+3}, 0x20000\ns_mov_b32 s{sV+2}, {XB}\ns_mov_b32 s{sV+3}, 0x20000")
    P.wlg("karg")
    P.e(f"s_mov_b64 s[{sK}:{sK+1}], s[6:7]\ns_mov_b64 s[{sV}:{sV+1}], s[8:9]\ns_mov_b64 s[{sX}:{sX+1}], s[4:5]\ns_mov_b64 s[{sW1}:{sW1+1}], s[18:19]\ns_mov_b64 s[{sH}:{sH+1}], s[12:13]")
    if opt.get("burst"):
        nb = opt["burst"]
        P.e(f"s_lshl_b32 s3, s2, 2\ns_add_u32 s3, s3, s{sW}\ns_mul_i32 s3, s3, {nb*1024}\ns_add_u32 s3, s3, 0x4000000\nv_lshlrev_b32 v{t0}, 4, v0\nv_add_u32 v{t0}, s3, v{t0}")
        for i in range(nb):
            P.e(f"global_load_dwordx4 v[{128+4*(i%16)}:{131+4*(i%16)}], v{t0}, s[26:27]\nv_add_u32 v{t0}, 1024, v{t0}", tag="burst")
        P.wvm("burst")
    P.append(mark("FIRST"))
    P.e(f"s_load_dword s{sTAG}, s[26:27], 0", tag="etag")
    for n, p, size in ((sW2, 20, WB), (sWS, 26, WS_END), (sO, 22, XB)):
        P.e(f"s_mov_b64 s[{n}:{n+1}], s[{p}:{p+1}]\ns_mov_b32 s{n+2}, {size}\ns_mov_b32 s{n+3}, 0x20000")
    if diag: P.e("s_mov_b32 s4, s92")
    stamp(P, "iss0")
    vr_, vlo = RA, RA + 1
    vP0, vP1, vPh, vTa, vTa4 = [va(n) for n in "P0 P1 Ph Ta Ta4".split()]
    sP0o, sP0m, sHal, sCAo = sa("P0o"), sa("P0m"), sa("Hal"), sa("CAo")
    P0SU = Stream()
    P0SU.e(f"""
s_lshl_b32 s{sRB}, s{sR}, 1
s_add_u32 s{sRB}, s{sRB}, s{sHALF}
s_lshl_b32 s{sM0b}, s{sW}, 13
v_lshl_add_u32 v{vP0}, v{vl7}, 4, v{t3}
v_add_u32 v{vP1}, {7168-1040}, v{vP0}
s_lshl_b32 s{sP0o}, s{sRB}, 2
s_add_u32 s{sP0o}, s{sP0o}, s{sW}
s_mul_i32 s{sP0o}, s{sP0o}, {16*896}
s_lshl_b32 s{sT1}, s{sCB}, 7
s_add_u32 s{sP0o}, s{sP0o}, s{sT1}
s_mul_i32 s{sP0m}, s{sW}, 2080
s_cmp_eq_u32 s{sRB}, 0
s_cselect_b32 s{sT1}, 0x40000000, 0
s_cselect_b32 s{sHal}, 0, 7168
s_sub_u32 s{sHal}, s{sP0o}, s{sHal}
s_mul_i32 s3, s{sW}, {16*896}
s_sub_u32 s{sHal}, s{sHal}, s3
v_add_u32 v{vPh}, s{sT1}, v{vP0}
s_lshl_b32 s{sT1}, s{sW}, 3
v_add_u32 v{vPair}, s{sT1}, v{vl3}
s_lshl_b32 s{sT1}, s{sCB}, 5
v_add_lshl_u32 v{vTa}, v{vPair}, s{sT1}, 2
v_lshlrev_b32 v{vTa4}, 2, v{vTa}
v_lshlrev_b32 v{vl16}, 4, v0
s_add_u32 s{sCAo}, s{sT1}, s{sRB}
s_lshl_b32 s{sCAo}, s{sCAo}, 2
s_add_u32 s{sCAo}, s{sCAo}, s{sW}
s_lshl_b32 s{sCAo}, s{sCAo}, 11
s_mov_b32 s{sH+2}, {XB}
s_mov_b32 s{sH+3}, 0x20000""")
    vXA = [[va(f"XA{h}{k}") for k in range(4)] for h in range(2)]
    vWA = [[va(f"WA{h}{k}") for k in range(2)] for h in range(2)]
    vZero = va("zero", 4, 4); vEX = va("EX")
    sERo, sECo = sa("ERo"), sa("ECo")
    P.e(f"""
v_lshrrev_b32 v{vl5}, 5, v0
v_and_b32 v{t0}, 31, v0
s_lshr_b32 s{sT1}, s{sW}, 1
s_lshl_b32 s{sT0}, s{sT1}, 13
v_lshl_add_u32 v{t0}, v{t0}, 7, s{sT0}
v_bfe_u32 v{t1}, v0, 1, 3
v_xor_b32 v{t1}, v{t1}, v{vl5}""")
    for k in range(4):
        P.e(f"""
v_xor_b32 v{t3}, {2*k}, v{t1}
v_lshl_add_u32 v{vXA[0][k]}, v{t3}, 4, v{t0}
v_add_u32 v{vXA[1][k]}, 0x10000, v{vXA[0][k]}""")
    P.e(f"""
v_bfe_u32 v{vr_}, v0, 2, 2
v_and_b32 v{t0}, 3, v0
v_lshlrev_b32 v{vlo}, 3, v{t0}
v_and_b32 v{t0}, 16, v0
v_lshl_add_u32 v{vlo}, v{t0}, 1, v{vlo}
v_lshl_add_u32 v{t0}, v{vl5}, 3, v{vr_}
v_lshl_add_u32 v{t0}, v{t0}, 8, v{vlo}
v_add_u32 v{t0}, 16384, v{t0}
s_and_b32 s{sT0}, s{sW}, 1
s_lshl_b32 s3, s{sT0}, 1
v_xor_b32 v{t1}, s3, v{vr_}
v_lshl_add_u32 v{vWA[0][0]}, v{t1}, 6, v{t0}
v_xor_b32 v{vWA[0][1]}, 64, v{vWA[0][0]}
v_add_u32 v{vWA[1][0]}, 0x10000, v{vWA[0][0]}
v_add_u32 v{vWA[1][1]}, 0x10000, v{vWA[0][1]}
v_mov_b32 v{vZero}, 0
v_mov_b32 v{vZero+1}, 0
v_mov_b32 v{vZero+2}, 0
v_mov_b32 v{vZero+3}, 0
v_lshlrev_b32 v{t0}, 30, v{vl5}
v_or_b32 v{vEX}, v{t0}, v{vl16}
s_lshl_b32 s{sERo}, s{sR}, 1
s_add_u32 s{sERo}, s{sERo}, s{sT1}
s_lshl_b32 s{sERo}, s{sERo}, 10
s_add_u32 s{sERo}, s{sERo}, {WS_RT}
s_mul_i32 s{sECo}, s{sHALF}, 7
s_add_u32 s{sECo}, s{sECo}, s{sCB}
s_lshl_b32 s{sECo}, s{sECo}, 1
s_add_u32 s{sECo}, s{sECo}, s{sT0}
s_lshl_b32 s{sECo}, s{sECo}, 10
s_add_u32 s{sECo}, s{sECo}, {WS_CT}""")
    vK0, vK1, vKV = va("K0"), va("K1"), va("KV")
    sKVo, sF0w, sF0r, sF1w, sF1x, sF1r, sHst, sHo, sHo2, sW2o, sCAh, sUo = [sa(n) for n in "KVo F0w F0r F1w F1x F1r Hst Ho Ho2 W2o CAh Uo".split()]
    sCHo = 96
    vHS = [vl16, va("HS1")]
    P.e(f"""
v_mul_u32_u24 v{t0}, 1040, v{vl7}
v_lshl_add_u32 v{vK0}, v{vPair}, 2, v{t0}
v_add_u32 v{vK0}, {P0K}, v{vK0}
v_add_u32 v{vK1}, 1040, v{vK0}
v_mul_u32_u24 v{t0}, 12288, v{vPair}
v_lshl_add_u32 v{vKV}, v{vl7}, 4, v{t0}
s_mul_i32 s{sKVo}, s{sCB}, {32*12288}
s_mul_i32 s{sT0}, s{sRB}, 384
s_add_u32 s{sKVo}, s{sKVo}, s{sT0}
s_add_u32 s{sKVo}, s{sKVo}, {WS_KVT}
s_lshr_b32 s{sT0}, s{sRB}, 3
s_lshl_b32 s{sT1}, s{sCB}, 2
s_add_u32 s{sF0w}, s{sT1}, s{sT0}
s_lshl_b32 s{sF0w}, s{sF0w}, 2
s_add_u32 s{sF0w}, s{sF0w}, s{sW}
s_lshl_b32 s{sF0w}, s{sF0w}, 5
s_and_b32 s{sT2}, s{sRB}, 7
s_add_u32 s{sF0w}, s{sF0w}, s{sT2}
s_lshl_b32 s{sF0w}, s{sF0w}, 2
s_add_u32 s{sF0w}, s{sF0w}, {MB0}
s_sub_u32 s{sT2}, 3, s{sW}
s_add_u32 s{sF0r}, s{sT1}, s{sT2}
s_lshl_b32 s{sF0r}, s{sF0r}, 2
s_add_u32 s{sF0r}, s{sF0r}, s{sT0}
s_lshl_b32 s{sF0r}, s{sF0r}, 7
s_add_u32 s{sF0r}, s{sF0r}, {MB0}
s_lshl_b32 s{sF1r}, s{sRB}, 9
s_add_u32 s{sF1r}, s{sF1r}, {MB1}""")
    P.e(f"""
s_mul_i32 s{sHo2}, s{sRB}, 229376
s_add_u32 s{sHo2}, s{sHo2}, {WS_H}
s_lshr_b32 s{sT0}, s{sW}, 1
s_and_b32 s{sT1}, s{sW}, 1
s_lshl_b32 s{sT2}, s{sCB}, 1
s_add_u32 s{sT2}, s{sT2}, s{sT1}
s_mul_i32 s{sHst}, s{sT0}, {2*57344}
s_add_u32 s{sHst}, s{sHst}, s{sHo2}
s_lshl_b32 s3, s{sT2}, 12
s_add_u32 s{sHst}, s{sHst}, s3
v_add_u32 v{vHS[1]}, 57344, v{vl16}""")
    for dst, add in ((sF1w, 0), (sF1x, 1)):
        P.e(f"""
s_lshl_b32 s3, s{sT2}, 1
s_add_u32 s3, s3, {add}
s_mul_i32 s3, s3, 37
s_lshr_b32 s3, s3, 8
s_lshl_b32 s{dst}, s3, 7
s_add_u32 s{dst}, s{dst}, s{sF1r}
s_mul_i32 s3, s3, 7
s_lshr_b32 s3, s3, 1
s_sub_u32 s3, s{sT2}, s3
s_lshl_b32 s3, s3, 1
s_add_u32 s3, s3, s{sT0}
s_lshl_b32 s3, s3, 2
s_add_u32 s{dst}, s{dst}, s3""")
    vD2 = [va(f"D2{q}") for q in range(4)]; vW2A = [[va(f"W2A{h}{d}") for d in range(2)] for h in range(2)]
    vCAw, vCAg, vCA, vCB, vUW, vUZ, vUX, vCAd = [va(n) for n in "CAw CAg CA CB UW UZ UX CAd".split()]
    P.e(f"""
s_lshl_b32 s3, s{sW}, 7
s_add_u32 s{sF1r}, s{sF1r}, s3
s_mul_i32 s3, s{sW}, 14336
s_add_u32 s{sHo2}, s{sHo2}, s3
s_mul_i32 s3, s{sHALF}, {2*57344}
s_sub_u32 s{sHo}, s{sHo2}, s3
s_add_u32 s{sHo}, s{sHo}, {2*57344}
s_add_u32 s{sHo2}, s{sHo2}, s3
v_and_b32 v{t1}, 16, v0
v_lshlrev_b32 v{t1}, 2, v{t1}
v_xor_b32 v{vD2[0]}, v{t1}, v{vP0}
v_add_u32 v{vD2[1]}, 6144, v{vD2[0]}
v_add_u32 v{vD2[2]}, {2*6144}, v{vD2[0]}
v_add_u32 v{vD2[3]}, {3*6144}, v{vD2[0]}
s_lshl_b32 s{sW2o}, s{sHALF}, 2
s_add_u32 s{sW2o}, s{sW2o}, s{sW}
s_mul_i32 s{sW2o}, s{sW2o}, {224*896}
s_lshl_b32 s{sT2}, s{sCB}, 7
s_add_u32 s{sW2o}, s{sW2o}, s{sT2}
v_lshl_add_u32 v{t0}, v{vl5}, 2, v{vr_}
v_lshl_add_u32 v{t0}, v{t0}, 7, v{vlo}
v_add_u32 v{t0}, s{sM0b}, v{t0}
v_lshrrev_b32 v{t1}, 1, v{vr_}
v_lshl_add_u32 v{vW2A[0][0]}, v{t1}, 6, v{t0}
v_xor_b32 v{vW2A[0][1]}, 64, v{vW2A[0][0]}
v_add_u32 v{vW2A[1][0]}, 0x10000, v{vW2A[0][0]}
v_add_u32 v{vW2A[1][1]}, 0x10000, v{vW2A[0][1]}
s_lshl_b32 s{sCHo}, s{sCB}, 5
s_add_u32 s{sCHo}, s{sCHo}, s{sRB}
s_lshl_b32 s{sCHo}, s{sCHo}, 13
s_mul_i32 s{sT2}, s{sT0}, 16640
s_add_u32 s{sT2}, s{sT2}, {CA}
s_lshl_b32 s3, s{sT1}, 11
s_add_u32 s3, s3, s{sT2}
v_add_u32 v{vCAd}, s3, v{vl16}
v_and_b32 v{t0}, 15, v0
v_mul_u32_u24 v{t1}, 1040, v{vl4}
v_add_lshl_u32 v{vCAw}, v{t0}, v{t1}, 2
v_add_u32 v{vCAw}, s{sT2}, v{vCAw}
s_lshl_b32 s3, s{sT1}, 6
v_add3_u32 v{t0}, v{t0}, v{vl4}, s3
v_cmp_eq_u32 vcc, 15, v{t0}
v_mov_b32 v{t1}, {L_EXZ}
v_cndmask_b32 v{vCAg}, 0, -1, vcc
v_cmp_ge_u32 vcc, 15, v{t0}
v_cndmask_b32 v{vCAw}, v{t1}, v{vCAw}, vcc
v_and_b32 v{t0}, 3, v0
v_mul_u32_u24 v{t0}, 4160, v{t0}
v_add_u32 v{t1}, v{vr_}, v{vl4}
v_lshl_add_u32 v{t0}, v{t1}, 4, v{t0}
s_lshl_b32 s3, s{sT1}, 8
s_add_u32 s{sT2}, s{sT2}, s3
v_add_u32 v{vCA}, s{sT2}, v{t0}
v_and_b32 v{t0}, 1, v0
v_mul_u32_u24 v{t0}, 4576, v{t0}
v_bfe_u32 v{t1}, v0, 1, 3
v_lshlrev_b32 v{t1}, 2, v{t1}
v_sub_u32 v{t1}, v{vl4}, v{t1}
v_lshl_add_u32 v{t0}, v{t1}, 4, v{t0}
s_mul_i32 s{sT2}, s{sT0}, 9152
s_add_u32 s{sT2}, s{sT2}, s3
s_add_u32 s{sT2}, s{sT2}, {CB + 28*16}
v_add_u32 v{vCB}, s{sT2}, v{t0}
s_lshr_b32 s{sUo}, s{sCHo}, 13
s_mul_i32 s{sUo}, s{sUo}, 12288
s_add_u32 s{sUo}, s{sUo}, {WS_KVT}
s_lshl_b32 s3, s{sW}, 10
s_add_u32 s3, s3, {CB}
v_add_u32 v{vUW}, s3, v{vl16}
v_min_u32 v{t0}, 29, v0
s_mul_i32 s3, s{sW}, 4576
s_add_u32 s3, s3, {CB + 4096}
v_lshl_add_u32 v{vUZ}, v{t0}, 4, s3
v_sub_u32 v{t0}, 31, v{vPair}
v_mul_u32_u24 v{t0}, 384, v{t0}
v_sub_u32 v{t1}, 7, v{vl7}
v_lshl_add_u32 v{vUX}, v{t1}, 4, v{t0}""")
    stamp(P, "su")
    P.wlg("etag")
    P.e(f"s_mul_i32 s{sTAG}, s{sTAG}, {LCG_A}\ns_add_u32 s{sTAG}, s{sTAG}, {LCG_C}\ns_and_b32 s{sTAG}, s{sTAG}, {TAGMASK}\ns_mov_b32 s{sTAG+1}, s{sTAG}")

    vTap = va("tap", 4, 4); vKVf = va("KVf", 16); vU = RA + 40
    def tagchk(regs):
        pr = ["vcc"] + [f"s[{sPL+2*k}:{sPL+2*k+1}]" for k in range(4)] + [f"s[{sT0}:{sT1}]"]
        t = "\n".join(f"v_cmp_ne_u32 {pr[k]}, s{sTAG}, v{r}" for k, r in enumerate(regs))
        return t + "\n" + "\n".join(f"s_or_b64 vcc, vcc, {pr[k]}" for k in range(1, len(regs)))
    acc = RB_; exf = RC; hp = RA; us = RA + 32
    NB = 4; fb = 160
    npre_w2 = opt.get("w2pre", 4)
    def p0_loads():
        s = Stream()
        s.e(f"global_load_dwordx4 {vr(vTap,4)}, v{vTa4}, s[10:11]", tag="p0")
        out = [s]
        for n_, (sr, base) in enumerate(((sK, P0K), (sV, P0V))):
            s = Stream()
            s.glue(f"s_cmp_lg_u32 s{sW}, {n_}\ns_cbranch_scc1 NOHALO{n_}\ns_mov_b32 m0, {base}")
            s[-1].append(I(f"buffer_load_dwordx4 v{vPh}, {srd(sr)}, s{sHal} offen lds", kind="cond"))
            s[-1].append(I(f"NOHALO{n_}:"))
            s.dma(f"buffer_load_dwordx4 v{vP0}, {srd(sr)}, s{sP0o} offen lds", (sP0m, base + 1040), "p0")
            s.dma(f"buffer_load_dwordx4 v{vP1}, {srd(sr)}, s{sP0o} offen offset:1040 lds", (sP0m, base + 1040), "p0")
            out.append(s)
        return list(out[0]) + list(out[1]), list(out[2])
    def phase0(tmp):
        kf = tmp; kraw = tmp + 24; vraw = tmp + 36; tf = tmp + 46; am = tmp + 54; pk = tmp + 24
        a0 = vKVf
        areg = lambda i: am if i < 0 else a0 + 2 * i
        Z = Stream()
        Z.e(f"ds_read2_b32 {vr(kraw,2)}, v{vK0} offset0:128 offset1:160\nds_read2_b32 {vr(kraw+2,2)}, v{vK0} offset0:192 offset1:224", tag="k")
        for i in range(4): Z.e(f"ds_read2_b32 {vr(kraw+4+2*i,2)}, v{vK1} offset0:{64*i} offset1:{64*i+32}", tag="k")
        Z.e(f"v_add_u32 v{vK1}, {P0V-P0K}, v{vK1}")
        Z.e(f"ds_read_b32 v{vraw+8}, v{vK0} offset:{P0V-P0K+896}", tag="v")
        for i in range(4): Z.e(f"ds_read2_b32 {vr(vraw+2*i,2)}, v{vK1} offset0:{64*i} offset1:{64*i+32}", tag="v")
        Y = Stream()
        for c in range(2):
            for h in range(2):
                Y.e(f"v_lshlrev_b32 v{tf+2*(2*h)+c}, 16, v{vTap+2*c+h}\nv_and_b32 v{tf+2*(2*h+1)+c}, 0xffff0000, v{vTap+2*c+h}")
        Y.wlg("k")
        for i in range(12):
            Y.e(f"v_lshlrev_b32 v{kf+2*i}, 16, v{kraw+i}\nv_and_b32 v{kf+2*i+1}, 0xffff0000, v{kraw+i}")
        Y.wlg("v")
        W = Stream()
        for i in range(-1, 8): W.e(f"v_pk_mul_f32 {vr(areg(i),2)}, {vr(kf+2*(i+1),2)}, {vr(tf+6,2)}")
        for t in (2, 1, 0):
            for i in range(-1, 8): W.e(f"v_pk_fma_f32 {vr(areg(i),2)}, {vr(kf+2*(i+4-t),2)}, {vr(tf+2*t,2)}, {vr(areg(i),2)}")
        X2 = Stream()
        for i in range(-1, 8):
            vv = vraw + (8 if i < 0 else i)
            X2.e(f"""v_lshlrev_b32 v{kf+2*(i+1)}, 16, v{vv}
v_and_b32 v{kf+2*(i+1)+1}, 0xffff0000, v{vv}
""" + (f"v_pk_mul_f32 {vr(areg(i),2)}, {vr(areg(i),2)}, {vr(kf+2*(i+1),2)}" if p0pos < 0 else f"""v_mul_f32 v{areg(i)}, v{areg(i)}, v{kf+2*(i+1)}
v_mul_f32 v{areg(i)+1}, v{areg(i)+1}, v{kf+2*(i+1)+1}"""))
        for k in range(3): X2.e(f"v_mov_b32 v{pk+4*k+3}, s{sTAG}")
        for c in range(2):
            for d in range(4):
                dst = pk + 4*c + d if d < 3 else pk + 8 + c
                X2.e(f"v_cvt_pk_bf16_f32 v{dst}, v{a0+2*(7-2*d)+c}, v{a0+2*(6-2*d)+c}")
        X2.e(f"v_cvt_pk_bf16_f32 v{pk+10}, v{am}, v{am+1}")
        for k in range(3): X2.e(f"buffer_store_dwordx4 {vr(pk+4*k,4)}, v{vKV}, {srd(sWS)}, s{sKVo} offen offset:{k*128} sc1", tag="p0st")
        return Z, Y, W, X2
    def g1_reads(kap):
        i, ks = divmod(kap, 4)
        s = Stream(); sl = i % 3; h = 1 if sl == 2 else 0; base = sl * SLOT if sl < 2 else 0
        b = fb + 16 * (kap % NB); tg = f"fr{kap}"
        s.e(f"ds_read_b128 {ar(b,4)}, v{vXA[h][ks]} offset:{base}", tag=tg)
        for hh in range(2): s.e(f"ds_read_b64_tr_b16 {ar(b+8+2*hh,2)}, v{vWA[h][0]} offset:{base+ks*4096+hh*1024}", tag=tg)
        s.e(f"ds_read_b128 {ar(b+4,4)}, v{vXA[h][ks]} offset:{base+4096}", tag=tg)
        for hh in range(2): s.e(f"ds_read_b64_tr_b16 {ar(b+12+2*hh,2)}, v{vWA[h][1]} offset:{base+ks*4096+hh*1024}", tag=tg)
        return s
    TILES = ((0, 0), (0, 1), (1, 0), (1, 1))
    def mf(kap, f, st):
        b = fb + 16 * (kap % NB); a = acc + (2*f+st)*16
        return f"v_mfma_f32_32x32x16_bf16 {vr(a,16)}, {ar(b+8+4*f,4)}, {ar(b+4*st,4)}, {'0' if kap == 0 else vr(a,16)}"
    def mx(f, st):
        a = acc + (2*f+st)*16
        return f"v_mfma_f32_32x32x16_bf16 {vr(a,16)}, {vr(exf+8+4*f,4)}, {vr(exf+4*st,4)}, {vr(a,16)}"
    exl = "\n".join(f"buffer_load_dwordx4 {vr(exf+4*k,4)}, v{vEX}, {srd(sWS)}, s{sERo if k < 2 else sECo} offen offset:{(k%2)*512} sc1" for k in range(4))
    W2B = [SLOT, SLOT + 4096, 2*SLOT, 2*SLOT + 4096, 0, 4096, SLOT]
    def w2_dma(g):
        s = Stream()
        m0 = (sM0b, W2B[g])
        if g == 6:
            if npre_w2 == 0: s += w2_read(0)
            s.wlg("w2r0")
        for q in range(4): s.dma(f"buffer_load_dwordx4 v{vD2[q]}, {srd(sW2)}, s{sW2o} offen offset:{q*1024} lds", m0, f"w2d{g}")
        if g < 6: s.e(f"s_add_u32 s{sW2o}, s{sW2o}, {32*896}")
        return s
    def w2_read(g):
        s = Stream()
        b = W2B[g]; h = 1 if b >= 65536 else 0; b -= h * 65536; regs = vW2A[h]
        s.wvm(f"w2d{g}")
        for kbl in range(2):
            for dt in range(2):
                a = ((2*g + kbl) * 2 + dt) * 4
                for hh in range(2):
                    s.e(f"ds_read_b64_tr_b16 {ar(a+2*hh,2)}, v{regs[dt]} offset:{b + kbl*2048 + hh*1024}", tag=f"w2r{g}")
        return s
    vSS = RC
    vHd = va("Hd")
    def convA_load():
        s = Stream()
        for k, off in enumerate((0, 1024, 4, 1028)):
            s.e(f"buffer_load_dwordx4 {vr(vSS+4*k,4)}, v{vl16}, {srd(sH)}, s{sCAo} offen offset:{off}", tag="ca")
        return s
    def convA_head(): return Stream()
    def convA_write():
        s = Stream(); s.wvm("ca")
        for qq in range(2):
            A = vSS + 4*qq; B = vSS + 8 + 4*qq; o = qq * 1024
            s.e(f"""ds_write_b128 v{vCAd}, {vr(A,4)} offset:{3*4160 + 48 + o}
ds_write_b128 v{vCAd}, {vr(B,4)} offset:{64 + o}
ds_write_b64 v{vCAd}, {vr(A,2)} offset:{4160 + 56 + o}
ds_write_b64 v{vCAd}, {vr(A+2,2)} offset:{4160 + 64 + o}
ds_write_b64 v{vCAd}, {vr(B,2)} offset:{2*4160 + 56 + o}
ds_write_b64 v{vCAd}, {vr(B+2,2)} offset:{2*4160 + 64 + o}""", tag="caw")
        s.glue(f"v_readfirstlane_b32 s3, v{vSS}\nv_and_b32 v{vHd}, s3, v{vCAg}")
        s.e(f"ds_write_b32 v{vCAw}, v{vHd}", tag="caw")
        return s
    ul = "\n".join(f"buffer_load_dwordx4 {vr(vU+4*k,4)}, v{vUX}, {srd(sWS)}, s{sUo} offen offset:{k*128} sc1" for k in range(3))

    Q = []
    def q(items, e, d=None):
        for x in items: Q.append((x, e, d))
    pk_, pv_ = p0_loads()
    Z, Y, W, X2 = phase0(RA)
    d0 = list(g1_dma(0)); d1 = list(g1_dma(1)); d12 = d1 + (list(g1_dma(2)) if p0pos < 0 else [])
    ca = list(convA_load())
    seq = {"k": pk_, "v": pv_, "a": ca[:2], "b": ca[2:], "x": d0[:4], "w": d0[4:], "y": d1[:4], "z": d1[4:]}
    allf = []
    fs = opt.get("first", "kvabxw" if p0pos < 0 else "xwyz")
    for c in fs: allf += seq[c]
    nf = opt.get("nfirst", 13 if p0pos < 0 else 12)
    first, second = allf[:nf], allf[nf:]
    hd = Stream()
    for x in P:
        if not isinstance(x, list) and x.kind == "mark":
            if x.t.endswith("FIRST"): hd += first + (list(P0SU) if p0pos >= 0 and not set(fs) & set("kva") else [])
            elif p0pos < 0 or set(fs) & set("kva"): hd += P0SU
        else: hd.append(x)
    head = hd; P = Stream()
    if p0pos < 0:
        head += convA_head(); head += second
        head.wlg("ALL"); head.wvm("p0"); head.e("s_barrier")
        stamp(head, "p0go")
        nz = opt.get("nz", 3)
        P.append(mark("z0"))
        stq = opt.get("stq", 1)
        cw_ = list(convA_write()); Wm = Stream()
        for k_, x in enumerate(W):
            Wm.append(x)
            if k_ % 2 == 1 and k_ > 4 and cw_: Wm.append(cw_.pop(0))
        P += Z; P += Y; P += Wm; P += cw_; P += (X2[:-3] if stq else X2)
        P.append(mark("z1"))
        q(d12[:nz], "z0", "z1")
        stamp(P, "p0done")
        n2 = opt.get("n2", 5); n3 = opt.get("n3", 13)
        P += d12[nz:n2]
        P.wlg("LDS"); P.wvm("g1d0"); P += d12[n2:n3]; P.e("s_barrier")
        q(d12[n3:], "k0", "pb1")
        if stq: q(X2[-3:], "k0", "k5")
    else:
        ns = opt.get("nsec", 99)
        head += second[:ns]
        head.wlg("ALL"); head.wvm("g1d0"); head += second[ns:]; head.e("s_barrier")
    stamp(P, "g1go")
    P += g1_reads(0); P += g1_reads(1)
    kp = 4 * p0pos + 2
    US = Stream()
    US.e(f"ds_write_b128 v{vUZ}, {vr(vZero,4)}", tag="uw")
    US.wvm("u")
    spin(US, tagchk([vU+3, vU+7, vU+11]), ul, "vmcnt(0)")
    US.e(f"v_mov_b32 v{vU+3}, v{vU+8}\nv_mov_b32 v{vU+7}, v{vU+9}\nv_lshrrev_b32 v{vU+11}, 16, v{vU+10}")
    US.e(f"ds_write_b128 v{vUW}, {vr(vU,4)} offset:4576\nds_write_b128 v{vUW}, {vr(vU+4,4)} offset:{9152+4576}", tag="uw")
    for c in range(2):
        for d in range(3): US.e(f"v_alignbyte_b32 v{us+4*c+d}, v{vU+4*c+d+1}, v{vU+4*c+d}, 2")
        US.e(f"v_alignbyte_b32 v{us+4*c+3}, v{vU+10+c}, v{vU+4*c+3}, 2")
        US.e(f"ds_write_b128 v{vUW}, {vr(us+4*c,4)} offset:{9152*c}", tag="uw")
    US = list(US); ku = opt.get("ku", 22)
    for kap in range(25):
        i, ks = divmod(kap, 4)
        if ks == 2:
            P.append(mark(f"pb{i}"))
            P.wlg("LDS"); P.wvm(f"g1d{i+1}")
            if i == p0pos: P.wvm("p0")
            P.e("s_barrier")
            stamp(P, f"g1b_{i}")
        P.append(mark(f"k{kap}"))
        if kap == opt.get("sig0", 7 if p0pos < 0 else kp + 5): P += signal(opt.get("sig0w"), sF0w)
        if kap == opt.get("poll0", 14): poll_issue(P, sF0r, "poll0")
        if p0pos >= 0 and kap == kp + 2: P += W
        P.wlg(f"fr{kap}")
        M = Stream()
        for (f, st) in TILES: M.e(mf(kap, f, st))
        fill = [(g1_reads(kap + 2), 0, 4 if ks != 1 else 3)]
        if kap == 24: fill = [list(g1_reads(26)) + list(g1_reads(27))]
        if kap == ku: P.append(mark("pu")); fill.append(US[:8])
        if kap == ku + 1: fill.append(US[8:])
        if p0pos >= 0:
            if kap == kp: fill = [(Z, 0, 2), (g1_reads(kap + 2), 2, 4), (Y[:12], 2, 4)]
            if kap == kp + 1: fill.append(Y[12:])
            if kap == kp + 2: fill.append(X2[:26])
            if kap == kp + 3: fill.append(X2[26:])
            kc = opt.get("kc", 14)
            if kap == kc: P.append(mark("pc")); caw = list(convA_write())
            if kc <= kap < kc + 4: fill.append(caw[(kap - kc) * 4:(kap - kc) * 4 + 4])
        P += merge(M, *fill)
    P.append(mark("pb6"))
    stamp(P, "pb6")
    P.wlg("LDS"); P.e("s_barrier")
    stamp(P, "g1b_6")
    P.append(mark("k26"))
    def epi(n):
        f, st = TILES[n]
        s = Stream(); a = acc + (2*f+st)*16; o = hp + 8 * n
        for r in range(8): s.e(f"v_cvt_pk_bf16_f32 v{o+r}, v{a+2*r}, v{a+2*r+1}")
        for r in range(8): s.e(f"v_pk_max_i16 v{o+r}, v{o+r}, 0")
        s.append(mark(f"e{n}"))
        return s
    def hstore(n):
        f, st = TILES[n]; s = Stream()
        for e in range(2): s.e(f"buffer_store_dwordx4 {vr(hp+8*n+4*e,4)}, v{vHS[st]}, {srd(sWS)}, s{sHst} offen offset:{f*2048+e*1024} sc1", tag="hst")
        return s
    M = Stream()
    EXC = Stream(); EXC.append(mark("px")); EXC.wvm("ex")
    spin(EXC, tagchk([exf+3, exf+7, exf+10, exf+14]) + "\ns_cmp_lg_u32 vcc_lo, 0", exl, "vmcnt(0)")
    for n_, t in enumerate(TILES):
        M.e(mf(25, *t) + "\n" + mf(26, *t) + "\n" + mf(27, *t))
        if n_ == 0: M += EXC
        M.e(mx(*t))
    LASTM = M
    cacc = 224
    cfr = lambda s_, k: (ar(112 + 4*k, 4) if s_ % 2 == 0 else vr(RB_ + 4*k, 4))
    def conv_reads(s_):
        s = Stream()
        for i in range(8):
            s.e(f"ds_read_b128 {cfr(s_, i)}, v{vCA} offset:{i*512 + s_*64}", tag=f"cA{s_}_{i}")
            s.e(f"ds_read_b128 {cfr(s_, 8+i)}, v{vCB} offset:{(7-i)*512 + s_*64}", tag=f"cB{s_}_{i}")
        return s
    def conv_mfma(s_):
        s = Stream(); done = set(); k = 36 * s_
        for n in range(8):
            s.wlg(f"cA{s_}_{n}", f"cB{s_}_{n}")
            prods = [(i, r) for i in range(n + 1) for r in range(n + 1) if i + r <= 7 and (i, r) not in done]
            prods.sort(key=lambda p: (min(p), p))
            for (i, r) in prods:
                done.add((i, r)); t = cacc + 4 * (i + r)
                first = (s_ == 0 and not any((a + c == i + r) and (a, c) != (i, r) for (a, c) in done))
                if k % 6 == 0: s.append(mark(f"c{k}"))
                s.e(f"v_mfma_f32_16x16x32_bf16 {ar(t,4)}, {cfr(s_, i)}, {cfr(s_, 8+r)}, {'0' if first else ar(t,4)}")
                k += 1
        return s
    for h in range(2):
        for k in range(4): V.release(f"XA{h}{k}")
        for k in range(2): V.release(f"WA{h}{k}")
    for k in range(4): V.release(f"DX{k}", f"DW{k}")
    V.release("EX", "K0", "K1", "P0", "P1", "Ph", "Ta4", "CAw", "CAd", "Hd", "CAg", "UW", "UZ", "UX", "tap")
    vGS = va("GS", 12, 4); vXr = va("xr", 8, 4); vY = va("Y", 12, 4); vS2 = va("S2", 8, 2)
    vGW = [va(f"GW{k}") for k in range(4)]; vGR, vGR2, vAW, vAR, vOut, vCW, vCR, vYS, vRA = [va(n) for n in "GR GR2 AW AR out CW CR YS RA".split()]
    vYA = vKV
    vRT = va("rt", 4, 2); vDd = va("Dd")
    vXc = RC
    sYst, sYld, sOo, sRTo, sOo2, sPXw, sPXr, sF2w, sF2r, sF3w, sF3r = sXo, sWo, sSt, sHal, sP0o, sXinc, sWinc, sF0w, sF0r, sCAh, sCAo
    TS = Stream()
    TS.e(f"""
v_mul_u32_u24 v{t0}, 896, v{vPair}
v_lshl_add_u32 v{vOut}, v{vl7}, 4, v{t0}
v_lshlrev_b32 v{vRA}, 4, v{vPair}
s_lshl_b32 s{sRTo}, s{sRB}, 10
s_add_u32 s{sRTo}, s{sRTo}, {WS_RT}
s_mul_i32 s{sOo}, s{sRB}, {64*896}
s_lshl_b32 s{sT1}, s{sCB}, 7
s_add_u32 s{sOo}, s{sOo}, s{sT1}
s_add_u32 s{sOo2}, s{sOo}, {32*896}
v_and_b32 v{t0}, 15, v0
v_lshlrev_b32 v{t1}, 2, v{vl4}
v_xor_b32 v{t0}, v{t0}, v{t1}
v_lshlrev_b32 v{t0}, 4, v{t0}
v_lshl_add_u32 v{t0}, v{vl4}, 8, v{t0}
s_add_u32 s{sT0}, s{sM0b}, {CA}
v_add_u32 v{vCW}, s{sT0}, v{t0}
v_and_b32 v{t1}, 3, v0
v_bfe_u32 v{t2}, v0, 2, 3
v_lshlrev_b32 v{t2}, 1, v{t2}
v_lshlrev_b32 v{t3}, 2, v{t1}
v_xor_b32 v{t2}, v{t2}, v{t3}
v_lshlrev_b32 v{t2}, 4, v{t2}
v_lshl_add_u32 v{t2}, v{t1}, 8, v{t2}
v_lshl_add_u32 v{t2}, v{vl5}, 10, v{t2}
s_lshl_b32 s{sT1}, s{sW}, 11
s_add_u32 s{sT0}, s{sT1}, {CA}
v_add_u32 v{vCR}, s{sT0}, v{t2}
s_add_u32 s{sYst}, s{sUo}, {WS_Y2 - WS_KVT}
s_add_u32 s{sYld}, s{sKVo}, {WS_Y2 - WS_KVT}
v_mul_u32_u24 v{t0}, 384, v{vPair}
v_lshl_add_u32 v{vYS}, v{vl7}, 4, v{t0}
s_mul_i32 s{sPXr}, s{sRB}, 7
s_add_u32 s{sPXr}, s{sPXr}, s{sCB}
s_xor_b32 s{sPXw}, s{sRB}, 1
s_mul_i32 s{sPXw}, s{sPXw}, 7
s_add_u32 s{sPXw}, s{sPXw}, s{sCB}
s_add_u32 s{sF2w}, s{sF0w}, {MB2 - MB0}
s_lshl_b32 s{sF2r}, s{sCB}, 2
s_add_u32 s{sF2r}, s{sF2r}, s{sW}
s_lshl_b32 s{sF2r}, s{sF2r}, 2
s_lshr_b32 s{sT0}, s{sRB}, 3
s_add_u32 s{sF2r}, s{sF2r}, s{sT0}
s_lshl_b32 s{sF2r}, s{sF2r}, 7
s_add_u32 s{sF2r}, s{sF2r}, {MB2}
s_lshl_b32 s{sT0}, s{sW}, 7
s_add_u32 s{sT0}, s{sT0}, {MB4}
s_lshl_b32 s{sF3w}, s{sPXw}, 9
s_lshl_b32 s{sF3r}, s{sPXr}, 9
s_add_u32 s{sF3w}, s{sF3w}, s{sT0}
s_add_u32 s{sF3r}, s{sF3r}, s{sT0}
s_mul_i32 s{sT0}, s{sW}, 3072
s_add_u32 s{sT0}, s{sT0}, {WS_PX}
s_mul_i32 s{sPXr}, s{sPXr}, 12288
s_mul_i32 s{sPXw}, s{sPXw}, 12288
s_add_u32 s{sPXr}, s{sPXr}, s{sT0}
s_add_u32 s{sPXw}, s{sPXw}, s{sT0}
v_and_b32 v{t0}, 31, v0
v_lshlrev_b32 v{t0}, 8, v{t0}
v_add_u32 v{t0}, s{sM0b}, v{t0}
v_xor_b32 v{t1}, v{vl7}, v{vl5}""")
    for k in range(4): TS.e(f"v_xor_b32 v{t2}, {2*k}, v{t1}\nv_lshl_add_u32 v{vGW[k]}, v{t2}, 4, v{t0}")
    TS.e(f"""
v_lshlrev_b32 v{t0}, 1, v{vl7}
v_xor_b32 v{t0}, v{t0}, v{vl3}
v_lshlrev_b32 v{t1}, 8, v{vPair}
v_lshl_add_u32 v{vGR}, v{t0}, 4, v{t1}
v_xor_b32 v{vGR2}, 16, v{vGR}
s_lshl_b32 s{sT0}, s{sW}, 4
v_xor_b32 v{vAR}, s{sT0}, v{vGR}
v_add_u32 v{vAR}, {L_AP}, v{vAR}
v_lshrrev_b32 v{t0}, 1, v{vPair}
v_xor_b32 v{t0}, v{t0}, v{vl7}
v_lshlrev_b32 v{t0}, 4, v{t0}
v_and_b32 v{t1}, 1, v{vPair}
v_lshl_add_u32 v{t0}, v{t1}, 3, v{t0}
v_lshl_add_u32 v{t0}, v{vl7}, 11, v{t0}
v_add_u32 v{vAW}, {L_AP}, v{t0}""")
    for k in range(3): TS.e(f"v_mov_b32 v{vGS+4*k+3}, s{sTAG}")
    rtl = f"buffer_load_dword v{vRT}, v{vRA}, {srd(sWS)}, s{sRTo} offen offset:4 sc1\nbuffer_load_dword v{vRT+2}, v{vRA}, {srd(sWS)}, s{sRTo} offen offset:516 sc1"
    XL = Stream()
    XL.e(f"buffer_load_dwordx4 {vr(vXr,4)}, v{vOut}, {srd(sX)}, s{sOo} offen\nbuffer_load_dwordx4 {vr(vXr+4,4)}, v{vOut}, {srd(sX)}, s{sOo2} offen", tag="xr")
    XL.e(rtl + f"\nglobal_load_dword v{vDd}, v{vTa}, s[14:15]", tag="xr")
    pub = opt.get("pubh", 84)
    rd_early = Stream()
    for g in range(npre_w2): rd_early += w2_read(g)
    P += merge(LASTM, (conv_reads(0)[:10], 0, 4), (epi(0), 5, 9), (epi(1), 9, 13), (epi(2), 13, 16), (conv_reads(0)[10:], 4, 12))
    for s_ in range(4):
        stamp(P, f"cv_{s_}")
        fill = []
        if s_ == 0: fill.append((epi(3), 3, 12))
        if s_ < 3: fill.append((conv_reads(s_ + 1), 4 if s_ else 8, 32))
        if s_ == 0: fill.append((TS[:24], 14, 36))
        if s_ == 1: fill.append(TS[24:64]); fill.append(rd_early[:18])
        if s_ == 2: fill.append(TS[64:]); fill.append(rd_early[18:])
        if pub // 36 == s_: fill.append(([mark("prepub")] + list(signal("hst", sF1w, sF1x)) + [mark("pub")], pub % 36, pub % 36 + 1))
        p1 = opt.get("poll1", 122)
        if p1 // 36 == s_: fill.append((poll_issue(Stream(), sF1r, "poll1"), p1 % 36, p1 % 36 + 1))
        P += merge(conv_mfma(s_), *fill)
    stamp(P, "convdone")
    NH = 16; hf = RA; gacc = RB_
    def hload(n):
        a, i = divmod(n, 14)
        s = Stream()
        txt = f"buffer_load_dwordx4 {vr(hf+4*(n%NH),4)}, v{vl16}, {srd(sWS)}, s{sHo} offen offset:{(i%4)*1024} sc1"
        if i % 4 == 3: txt += f"\ns_add_u32 s{sHo}, s{sHo}, 4096"
        elif i == 13 and a == 1: txt += f"\ns_mov_b32 s{sHo}, s{sHo2}"
        elif i == 13 and a != 3: txt += f"\ns_add_u32 s{sHo}, s{sHo}, {57344 - 12288}"
        s.glue(txt, tag=f"h{n}")
        return s
    NPRE = opt.get("npre", 14)
    P.append(mark("cdone"))
    P.e("s_barrier")
    for t in range(8): P.e(f"ds_write_b128 v{vCW}, {ar(cacc+4*t,4)} offset:{t*1024}", tag="cw")
    P.wlg("cw"); P.e("s_barrier")
    yr = RB_; yg = RB_ + 32
    for n0 in range(2):
        for w in range(4): P.e(f"ds_read_b128 {vr(yr+16*n0+4*w,4)}, v{vCR} offset:{w*8192+n0*16}", tag=f"yr{n0}")
    for k in range(3): P.e(f"v_mov_b32 v{yg+4*k+3}, s{sTAG}")
    ypos = lambda base, i: base + 4 * (i // 3) + i % 3
    for n0 in range(2):
        P.wlg(f"yr{n0}")
        b = yr + 16 * n0
        P.e(f"""
v_pk_add_f32 {vr(b,2)}, {vr(b,2)}, {vr(b+4,2)}
v_pk_add_f32 {vr(b+2,2)}, {vr(b+2,2)}, {vr(b+6,2)}
v_pk_add_f32 {vr(b+8,2)}, {vr(b+8,2)}, {vr(b+12,2)}
v_pk_add_f32 {vr(b+10,2)}, {vr(b+10,2)}, {vr(b+14,2)}""")
        for r in range(4): P.e(f"v_cvt_pk_bf16_f32 v{ypos(yg, 2*r+n0)}, v{b+r}, v{b+8+r}")
    P.append(mark("pre_y"))
    for k in range(3): P.e(f"buffer_store_dwordx4 {vr(yg+4*k,4)}, v{vYS}, {srd(sWS)}, s{sYst} offen offset:{k*128} sc1", tag="yst")
    P.wvm("xr")
    P += signal(None, sF2w)
    assert sT0 % 2 == 0 and sT1 == sT0 + 1
    V.release("D20", "D21", "D22", "D23", "HS1", "CA", "CB")
    vDf = va("Df", 2)
    P.e(f"""
v_and_b32 v{vRT+1}, 0xffff0000, v{vRT}
v_and_b32 v{vRT+3}, 0xffff0000, v{vRT+2}
v_lshlrev_b32 v{vRT}, 16, v{vRT}
v_lshlrev_b32 v{vRT+2}, 16, v{vRT+2}
v_rcp_f32 v{vRT+1}, v{vRT+1}
v_rcp_f32 v{vRT+3}, v{vRT+3}
v_lshlrev_b32 v{vDf}, 16, v{vDd}
v_and_b32 v{vDf+1}, 0xffff0000, v{vDd}""")
    for i in range(8):
        P.e(f"v_lshlrev_b32 v{vXc+2*i}, 16, v{vXr+i}\nv_and_b32 v{vXc+2*i+1}, 0xffff0000, v{vXr+i}")
    for i in range(8):
        P.e(f"v_pk_add_f32 {vr(vXc+2*i,2)}, {vr(vXc+2*i,2)}, {vr(vRT+2*(i//4),2)} op_sel_hi:[1,0]")
    stamp(P, "yst")
    P.append(mark("g2"))
    stamp(P, "g2go")
    late = Stream()
    for g in range(max(npre_w2, 1), 7): late += w2_read(g)
    P += late
    def g2_tile(a):
        s = Stream()
        for i in range(14):
            n = 14 * a + i
            s.wvm(f"h{n}")
            stamp(s, f"h_{n}")
            if a == 0 and i // 2 >= npre_w2: s.wlg(f"w2r{i//2}")
            for dt in range(2):
                c = gacc + (2*(a%2)+dt)*16
                s.e(f"v_mfma_f32_32x32x16_bf16 {vr(c,16)}, {ar((2*i+dt)*4,4)}, {vr(hf+4*(n%NH),4)}, {'0' if i == 0 else vr(c,16)}")
            if n + NPRE < 56: s += hload(n + NPRE)
        return s
    gslot = lambda a: (a % 2) * SLOT
    def gwrite(a):
        s = Stream()
        for dt in range(2):
            for k in range(4):
                s.e(f"ds_write_b128 v{vGW[k]}, {vr(gacc+(2*(a%2)+dt)*16+4*k,4)} offset:{gslot(a)+dt*128}", tag=f"gw{a}")
        return s
    def gread(a, b):
        s = Stream()
        for w in range(4):
            s.e(f"ds_read_b128 {vr(b+8*w,4)}, v{vGR} offset:{w*8192+gslot(a)}\nds_read_b128 {vr(b+8*w+4,4)}, v{vGR2} offset:{w*8192+gslot(a)}", tag=f"rd{a}")
        return s
    gpos = lambda idx: vGS + 4 * (idx // 3) + idx % 3
    def greduce(a, p):
        b = gacc + 32 * (a % 2)
        s0 = Stream(); s0.wlg(*([f"gw{a}", "aw"] if a == 2 else [f"gw{a}"])); s0.e("s_barrier")
        s2 = Stream(); s2.wlg(f"rd{a}")
        for r in range(8):
            d = b + r if a < 2 else vS2 + r
            s2.e(f"v_add_f32 v{b+r}, v{b+r}, v{b+8+r}\nv_add_f32 v{b+16+r}, v{b+16+r}, v{b+24+r}\nv_add_f32 v{d}, v{b+r}, v{b+16+r}")
            if a < 2 and r % 2: s2.e(f"v_cvt_pk_bf16_f32 v{gpos(4 * a + r // 2)}, v{b+r-1}, v{b+r}")
        return [(s0, p, p + 1), (gread(a, b), p, p + 4), (s2, p + 7, min(28, p + 12))]
    def px(st, so):
        s = Stream()
        for k in range(3):
            s.e(f"buffer_{'store' if st else 'load'}_dwordx4 {vr(vGS+4*k,4)}, v{vl16}, {srd(sWS)}, s{so} offen offset:{k*1024} sc1", tag="pxs" if st else "pxl")
        return s
    ylt = "\n".join(f"buffer_load_dwordx4 {vr(vY+4*k,4)}, v{vYA}, {srd(sWS)}, s{sYld} offen offset:{k*128} sc1" for k in range(3))
    yl = Stream().e(ylt, tag="y")
    AP = Stream()
    AP.wvm("y")
    spin(AP, tagchk([vY+3, vY+7, vY+11]), ylt, "vmcnt(0)")
    for i in range(8):
        yreg = ypos(vY, i)
        AP.e(f"""
v_lshlrev_b32 v{t1}, 16, v{yreg}
v_and_b32 v{t2}, 0xffff0000, v{yreg}
v_fma_f32 v{vKVf+2*i}, v{vKVf+2*i}, v{vDf}, v{t1}
v_fma_f32 v{vKVf+2*i+1}, v{vKVf+2*i+1}, v{vDf+1}, v{t2}
v_xor_b32 v{t0 if i % 2 else t3}, {i*16}, v{vAW}""")
        AP.e(f"ds_write_b64 v{t0 if i % 2 else t3}, {vr(vKVf+2*i,2)} offset:{i*256}", tag="aw")
    o = opt.get
    yp = poll_issue(Stream(), sF2r, "poll2")
    yl = poll_check(Stream(), sF2r, "poll2").e(ylt, tag="y")
    xp = Stream().e(f"s_load_dword s{sPL}, s[26:27], s{sF3r} glc", tag="poll3")
    xl = Stream(); xl.wlg("poll3")
    spin(xl, f"s_cmp_lg_u32 s{sPL}, s{sTAG}", f"s_load_dword s{sPL}, s[26:27], s{sF3r} glc", "lgkmcnt(0)")
    xl += px(0, sPXr)
    gw = o("gw", 12)
    P += g2_tile(0)
    P += merge(g2_tile(1), (gwrite(0), 2, gw), *greduce(0, gw + 3), (yp, o("ypp", 20), o("ypp", 20) + 1))
    P += merge(g2_tile(2), (gwrite(1), 2, gw), *greduce(1, gw + 2), (yl, o("ylp", 11), o("ylp", 11) + 4), (px(1, sPXw), min(27, gw + 14), 28))
    P += merge(g2_tile(3), (signal(None, sF3w), o("sgx", 4), o("sgx", 4) + 1), (gwrite(2), 2, gw), (AP, 2, 15), *greduce(2, 16), (xp, o("xpp", 17), o("xpp", 17) + 1))
    stamp(P, "g2done")
    P.e(f"v_xor_b32 v{t3}, 16, v{vAR}\nv_xor_b32 v{t0}, 64, v{vAR}\nv_xor_b32 v{t1}, 80, v{vAR}")
    rd = hf
    P.e(f"ds_read_b128 {vr(rd+32,4)}, v{vAR}\nds_read_b128 {vr(rd+36,4)}, v{t3}\nds_read_b128 {vr(rd+40,4)}, v{t0} offset:8192\nds_read_b128 {vr(rd+44,4)}, v{t1} offset:8192", tag="ra")
    P += xl
    P += gwrite(3)
    P.wvm("pxl")
    chk = tagchk([vGS + 4*k + 3 for k in range(3)])
    rel = "\n".join(x.t for x in flatten(px(0, sPXr))).replace("s3,", f"s{sT2},").replace(" s3 ", f" s{sT2} ")
    spin(P, chk, rel, "vmcnt(0)")
    P.wlg("ra")
    ost = opt.get("ost", "sc1")
    z = rd + 32
    for r in range(8):
        P.e(f"v_lshlrev_b32 v{vKVf+2*r}, 16, v{gpos(r)}\nv_and_b32 v{vKVf+2*r+1}, 0xffff0000, v{gpos(r)}")
    for r in range(0, 16, 2): P.e(f"v_pk_fma_f32 {vr(z+r,2)}, {vr(vXc+r,2)}, {vr(z+r,2)}, {vr(vKVf+r,2)}")
    for r in range(0, 16, 2): P.e(f"v_pk_add_f32 {vr(vXc+r,2)}, {vr(vXc+r,2)}, {vr(vRT+2*(r//8),2)} op_sel_hi:[1,0] neg_lo:[0,1] neg_hi:[0,1]")
    def fin(b, st, so):
        for r in range(0, 8, 2): P.e(f"v_pk_add_f32 {vr(b+r,2)}, {vr(b+r,2)}, {vr(z+8*st+r,2)}")
        for r in range(0, 8, 2): P.e(f"v_pk_fma_f32 {vr(b+r,2)}, {vr(b+r,2)}, {vr(vRT+2*st,2)}, {vr(vXc+8*st+r,2)} op_sel:[0,1,0] op_sel_hi:[1,1,1]")
        o = rd + 48 + 4 * st
        for r in range(4): P.e(f"v_cvt_pk_bf16_f32 v{o+r}, v{b+2*r}, v{b+2*r+1}")
        P.e(f"buffer_store_dwordx4 {vr(o,4)}, v{vOut}, {srd(sO)}, s{so} offen {ost}", tag="ost")
    P.wlg("gw3"); P.e("s_barrier")
    stamp(P, "lastbar")
    P += gread(3, rd)
    fin(vS2, 0, sOo)
    P.wlg("rd3")
    b = rd
    for r in range(0, 8, 2):
        P.e(f"v_pk_add_f32 {vr(b+r,2)}, {vr(b+r,2)}, {vr(b+8+r,2)}\nv_pk_add_f32 {vr(b+16+r,2)}, {vr(b+16+r,2)}, {vr(b+24+r,2)}")
    for r in range(0, 8, 2): P.e(f"v_pk_add_f32 {vr(b+r,2)}, {vr(b+r,2)}, {vr(b+16+r,2)}")
    fin(b, 1, sOo2)
    if diag:
        stamp(P, "ostiss")
        P.wvm("ALL")
        stamp(P, "end")
        P.e(f"s_waitcnt lgkmcnt(0)\ns_mul_i32 s{sT2}, s{sRB}, 7\ns_add_u32 s{sT2}, s{sT2}, s{sCB}\ns_lshl_b32 s{sT2}, s{sT2}, 2\ns_add_u32 s{sT2}, s{sT2}, s{sW}\ns_lshl_b32 s{sT2}, s{sT2}, 6\ns_add_u32 s{sT2}, s{sT2}, {WS_STAMP}\ns_mov_b64 exec, 1")
        for i, r in enumerate([4] + used_st + [used_st[-1]] * (9 - len(used_st))):
            P.e(f"v_mov_b32 v{t0}, s{r}\nbuffer_store_dword v{t0}, v{vZero}, {srd(sWS)}, s{sT2} offen offset:{4*i}")
    P.e("END:\ns_endpgm")

    dflt = "s3@k2,s4@k6,s5@k10,s6@k14,u@k18,w0@k18,w1@k18,x@k21,w2@k22,w3@k22"
    if p0pos >= 0: dflt = "pk@k0,pv@k0,s2@k0,s3@k2,a@k2,b@k2,s4@k6,s5@k10,s6@k14,u@k20,x@k22"
    for it in opt.get("order", dflt).split(","):
        nm, e = it.split("@")
        if nm[0] == "s" and nm != "st": q(g1_dma(int(nm[1])), e, f"pb{int(nm[1])-1}")
        elif nm == "st": q(X2[-3:], e, "k3")
        elif nm == "pk": q(pk_, e, f"pb{p0pos}")
        elif nm == "pv": q(pv_, e, f"pb{p0pos}")
        elif nm == "u": q(poll_check(Stream(), sF0r, "poll0").e(ul, tag="u"), e, "pu")
        elif nm == "x": q(Stream().e(exl, tag="ex"), e, "px")
        elif nm == "a": q(ca[:2], e, "pc")
        elif nm == "b": q(ca[2:] + list(convA_head()), e, "pc")
        elif nm == "r": q(w2_read(0), e, "pb6")
        elif nm[0] == "w": q(w2_dma(int(nm[1:])), e, "e0")
    rest = []
    for g in range(npre_w2, 6): rest += list(w2_dma(g))
    il = opt.get("il", 0)
    for n in range(4):
        for stx in hstore(n):
            q([stx], f"e{n}", "prepub")
            k = 0
            while rest and k < il:
                x = rest.pop(0); q([x], f"e{n}", "pre_y"); k += 1 if cost(x)[1] else 0
    k = 0
    while rest and k < opt.get("npost", 4):
        x = rest.pop(0); q([x], "e3", "pre_y"); k += 1 if cost(x)[1] else 0
    q(rest, "pub", "pre_y")
    q(w2_dma(6), "pub", "pre_y")
    q(XL, "pub", "pre_y")
    nb_ = opt.get("hbefore", 8)
    q(poll_check(Stream(), sF1r, "poll1"), "cdone", "pre_y")
    for n in range(NPRE): q(hload(n), "cdone", "pre_y" if n < nb_ else "g2")
    paces = {"z0": opt.get("pace_z", 120), "k0": opt.get("pace", 68), "e0": opt.get("pace_st", 56), "pub": opt.get("pace_pub", 64), "cdone": opt.get("pace_h", 30)}
    P = head + inject(P, Q, paces, verbose=opt.get("v", 0))
    H2 = helper(opt)
    for x in H2: x.kind = "cond"
    ins = resolve_waits(place_m0(flatten(P)), dummy=f"ds_read_b32 v{vDum}, v{vZero}")
    ins = pad_hazards(ins); H2 = pad_hazards(list(H2))
    if opt.get("hfirst", 1):
        cut = [k for k, x in enumerate(H2) if x.t.startswith("s_waitcnt vmcnt(12)")][0]
        at = [k for k, x in enumerate(ins) if x.t.startswith(f"s_load_dword s{sTAG}")][0] + 1
        ins = ins[:at] + [I("s_branch HSKIP")] + H2[:cut] + [I("s_branch HCONT"), I("HSKIP:")] + ins[at:]
        H2 = [I("HCONT:")] + H2[cut:]
    ins = ins + pad_hazards(list(tail)) + H2
    body = "\n".join(("" if x.t.endswith(":") else "  ") + x.t for x in ins)
    hdr = open("parallel_sum__ssm_conv_h3__dense_activation_relu__prompt.s.ref").read().split("; Override launch")[0]
    pad = opt.get("pad", 3328)
    return f"""{hdr}; generated by gen/gen6.py (own generator); fused LN + short conv + long conv (Toeplitz MFMA) + MLP
; @launch grid=(256,1,1) block=(256,1,1) lds={LDS_SIZE}
.amdgcn_target "amdgcn-amd-amdhsa--gfx950"
.text
.globl {KN}
.p2align 12
.fill {pad//4}, 4, 0xbf800000
.p2align 8
.type {KN},@function
{KN}:
{body}
CODE_END:
.section .rodata,"a"
.p2align 6
.amdhsa_kernel {KN}
  .amdhsa_next_free_vgpr 512
  .amdhsa_next_free_sgpr 102
  .amdhsa_accum_offset 256
  .amdhsa_group_segment_fixed_size 0
  .amdhsa_kernarg_size 96
  .amdhsa_user_sgpr_count 2
  .amdhsa_user_sgpr_kernarg_segment_ptr 1
  .amdhsa_system_sgpr_workgroup_id_x 1
  .amdhsa_float_denorm_mode_32 3
.end_amdhsa_kernel
"""

if __name__ == "__main__":
    opt = {}
    out = "parallel_sum__ssm_conv_h3__dense_activation_relu__prompt.s"
    for a in sys.argv[1:]:
        k, v = a.split("=")
        if k == "out": out = v
        else: opt[k] = int(v) if v.lstrip("-").isdigit() else v
    open(out, "w").write(gen(opt))
    print("wrote", out)
```
